```python
import torch

def _softmax(x, axis=-1):
    return torch.softmax(x, dim=axis)
def _gelu(x):
    return torch.nn.functional.gelu(x, approximate="tanh")
def _silu(x):
    return torch.nn.functional.silu(x)
def _sigmoid(x):
    return torch.sigmoid(x)
def _layernorm(x, axis=-1, eps=1e-5):
    m = x.mean(dim=axis, keepdim=True)
    v = x.var(dim=axis, keepdim=True, unbiased=False)
    return (x - m) / torch.sqrt(v + eps)
def _scatter_add(tgt, idx, src, axis=0):
    return tgt.clone().index_add_(axis, idx, src)
def _segment_sum(src, seg, n):
    out = torch.zeros((n,) + src.shape[1:], dtype=src.dtype)
    return out.index_add_(0, seg, src)
def _pad(x, pw):
    flat = tuple(v for pair in reversed(pw) for v in pair)
    return torch.nn.functional.pad(x, flat)

kernel_name = 'recurrent_scan__sliding_block_cached__dense_activation_relu__prompt'

def setup_inputs():

    _w = (lambda a: (lambda t: t.to(torch.bfloat16) if t.is_floating_point() else t)(torch.as_tensor(a)))
    def _A_setup():
        B, Sq, D = 1, 2048, 1024
        Hq, Hkv, Sk, Dh = 32, 4, 2048, 128
        assert Hq % Hkv == 0, (Hq, Hkv)
        return {
            "x": _w((lambda *s: torch.randn(*s, dtype=torch.bfloat16) * 0.05)(B, Sq, D)),
            "k_cache": _w((lambda *s: torch.randn(*s, dtype=torch.bfloat16) * 0.8)(B, Hkv, Sk, Dh)),
            "v_cache": _w((lambda *s: torch.randn(*s, dtype=torch.bfloat16) * 0.2)(B, Hkv, Sk, Dh)),
            "wq": _w((lambda *s: torch.randn(*s, dtype=torch.bfloat16) * 0.8)(D, Hq * Dh) * (D ** -0.5)),
            "wo": _w((lambda *s: torch.randn(*s, dtype=torch.bfloat16) * 0.2)(Hq * Dh, D) * ((Hq * Dh) ** -0.5)),
        }
    _A_in = _A_setup()

    def _B_setup():
        B, S, D, Dff = 1, 2048, 1024, 3584
        return {
            "x": _w((lambda *s: torch.randn(*s, dtype=torch.bfloat16) * 0.05)(B, S, D)),
            "w1": _w((lambda *s: torch.randn(*s, dtype=torch.bfloat16) * 0.1)(D, Dff)),
            "w2": _w((lambda *s: torch.randn(*s, dtype=torch.bfloat16) * 0.1)(Dff, D)),
        }
    _B_in = _B_setup()

    return {
        "A_x": _A_in["x"],
        "A_k_cache": _A_in["k_cache"],
        "A_v_cache": _A_in["v_cache"],
        "A_wq": _A_in["wq"],
        "A_wo": _A_in["wo"],
        "B_x": _B_in["x"],
        "B_w1": _B_in["w1"],
        "B_w2": _B_in["w2"],
    }

def reference(A_x, A_k_cache, A_v_cache, A_wq, A_wo, B_x, B_w1, B_w2):
    def _A_ref(x, k_cache, v_cache, wq, wo):
        B, Sq, D = x.shape
        Hq, Dh = 32, 128
        Hkv, Sk = k_cache.shape[1], k_cache.shape[2]
        W = min(4096, max(256, Sk // 4))
        rep = Hq // Hkv
        q = (lambda x, *d: x.permute(*d))((x @ wq).reshape(B, Sq, Hq, Dh), 0, 2, 1, 3)
        k = (lambda x, n, axis: torch.repeat_interleave(x, n, dim=axis))(k_cache[:, :, Sk - W:, :], rep, axis=1)
        v = (lambda x, n, axis: torch.repeat_interleave(x, n, dim=axis))(v_cache[:, :, Sk - W:, :], rep, axis=1)
        scores = torch.einsum("bhqd,bhkd->bhqk", q, k) * (Dh ** -0.5)
        p = _softmax(scores, axis=-1)
        o = torch.einsum("bhqk,bhkd->bhqd", p, v)
        return (lambda x, *d: x.permute(*d))(o, 0, 2, 1, 3).reshape(B, Sq, Hq * Dh) @ wo

    def _B_ref(x, w1, w2):
        h = torch.einsum("bsd,df->bsf", x, w1)
        zero = torch.zeros_like(h)
        h = torch.maximum(h, zero)
        return torch.einsum("bsf,fd->bsd", h, w2)

    x = A_x
    xn = _layernorm(x, axis=-1)
    s = _A_ref(xn, A_k_cache, A_v_cache, A_wq, A_wo)
    g = _silu(_B_ref(xn, B_w1, B_w2))
    return x + s * g
```

```python
class Reg:
    __slots__ = ("kind", "idx", "n")

    def __init__(self, kind, idx, n=1):
        self.kind, self.idx, self.n = kind, idx, n

    def __str__(self):
        if self.kind in ("vcc", "exec", "m0", "scc"):
            return self.kind
        if self.n == 1:
            return f"{self.kind}{self.idx}"
        return f"{self.kind}[{self.idx}:{self.idx + self.n - 1}]"

    __repr__ = __str__

    def __getitem__(self, i):
        if isinstance(i, slice):
            a, b = i.start or 0, i.stop
            return Reg(self.kind, self.idx + a, b - a)
        assert 0 <= i < self.n, (i, self.n)
        return Reg(self.kind, self.idx + i, 1)

    def sub(self, off, n):
        assert off + n <= self.n, (off, n, self.n)
        return Reg(self.kind, self.idx + off, n)

    def units(self):
        return {(self.kind, self.idx + i) for i in range(self.n)}


def V(i, n=1):
    return Reg("v", i, n)


def A(i, n=1):
    return Reg("a", i, n)


def S(i, n=1):
    return Reg("s", i, n)


VCC = Reg("vcc", 0, 1)
EXEC = Reg("exec", 0, 1)
M0 = Reg("m0", 0, 1)
SCC = Reg("scc", 0, 1)


def units(ops):
    u = set()
    for o in ops:
        if isinstance(o, Reg):
            u |= o.units()
    return u


class Instr:
    __slots__ = ("text", "kind", "wr", "rd", "attrs", "tag")

    def __init__(self, text, kind, wr=(), rd=(), tag=None, **attrs):
        self.text, self.kind = text, kind
        self.wr, self.rd = units(wr), units(rd)
        self.attrs = attrs
        self.tag = tag

    def states(self):
        if self.kind == "nop":
            return self.attrs["n"] + 1
        if self.kind in ("label", "comment"):
            return 0
        return 1

    def __repr__(self):
        return self.text


TRANS_OPS = {
    "v_exp_f32", "v_log_f32", "v_rcp_f32", "v_rsq_f32", "v_sqrt_f32", "v_sin_f32", "v_cos_f32",
    "v_rcp_iflag_f32",
}
MFMA_PASSES = {"v_mfma_f32_16x16x32_bf16": 4, "v_mfma_f32_32x32x16_bf16": 8}
XDL_TO_USE = {2: 5, 4: 8, 8: 12, 16: 20}
XDL_C_OVERLAP = {2: 4, 4: 6, 8: 10, 16: 18}
XDL_C_WAR = {2: 1, 4: 3, 8: 7, 16: 15}


def is_valu(i):
    return i.kind in ("valu", "trans")


def only_vec(u):
    return {x for x in u if x[0] in ("v", "a")}


def only_sc(u):
    return {x for x in u if x[0] in ("s", "vcc", "exec")}


def need_states(P, C):
    n = 0
    pk, ck = P.kind, C.kind
    if is_valu(P):
        pw = only_vec(P.wr)
        if ck == "mfma" and pw & C.rd:
            n = max(n, 2)
        if C.attrs.get("permlane") and pw & (C.rd | C.wr):
            n = max(n, 2)
        if C.attrs.get("dpp") and pw & C.rd:
            n = max(n, 2)
        if C.attrs.get("readlane") and pw & C.rd:
            n = max(n, 1)
        ps = only_sc(P.wr)
        if ps:
            if is_valu(C) and ps & C.rd:
                n = max(n, 4 if C.attrs.get("lanesel") else 2)
            if ck in ("vmem",) and ps & C.rd:
                n = max(n, 5)
    if pk == "trans" and C.kind in ("valu", "mfma") and P.wr & C.rd:
        n = max(n, 1)
    if pk == "mfma":
        ps = P.attrs["passes"]
        d = P.wr
        if ck == "mfma":
            if d & C.attrs["ab"]:
                n = max(n, XDL_TO_USE[ps])
            csrc = C.attrs["c"]
            if d & csrc:
                if d == csrc and C.attrs["passes"] == ps:
                    n = max(n, 0 if ps >= 4 else 2)
                else:
                    n = max(n, XDL_C_OVERLAP[ps])
            elif d & C.wr:
                n = max(n, XDL_TO_USE[ps])
        else:
            if d & (C.rd | C.wr):
                n = max(n, XDL_TO_USE[ps])
            if is_valu(C) and P.attrs["c"] & C.wr:
                n = max(n, XDL_C_WAR[ps])
    if pk == "salu" and ("m0", 0) in P.wr and C.attrs.get("uses_m0"):
        n = max(n, 1)
    if pk == "vmem" and P.attrs.get("wide_store"):
        data = P.attrs["data"]
        if data & C.wr:
            n = max(n, 2 if is_valu(C) else 1)
    return n


LOOKBACK = 24


def hazard_needs(trace):
    return None


def fix_hazards(instrs, prefix=()):
    out = list(prefix)
    start = len(out)
    for C in instrs:
        if C.kind in ("label", "comment"):
            out.append(C)
            continue
        need = 0
        dist = 0
        k = len(out) - 1
        cnt = 0
        while k >= 0 and cnt < LOOKBACK:
            P = out[k]
            if P.kind == "label" and P.attrs.get("barrier_unknown"):
                pass
            r = need_states(P, C) if P.kind not in ("label", "comment", "nop") else 0
            if r > dist:
                need = max(need, r - dist)
            dist += P.states()
            cnt += 1
            k -= 1
            if dist > 20:
                break
        while need > 0:
            m = min(need, 16)
            out.append(Instr(f"s_nop {m - 1}", "nop", n=m - 1))
            need -= m
        out.append(C)
    return out[start:]


def check_hazards(trace):
    errs = []
    for idx, C in enumerate(trace):
        if C.kind in ("label", "comment", "nop"):
            continue
        dist = 0
        k = idx - 1
        while k >= 0 and dist <= 20:
            P = trace[k]
            if P.kind not in ("label", "comment", "nop"):
                r = need_states(P, C)
                if r > dist:
                    errs.append((idx, P, C, r, dist))
            dist += P.states()
            k -= 1
    return errs


class WaitState:
    def __init__(self):
        self.vm = []
        self.lg = []

    def copy(self):
        w = WaitState()
        w.vm = list(self.vm)
        w.lg = list(self.lg)
        return w


def wait_pass(instrs, st, insert=True):
    out = []
    errs = []
    for C in instrs:
        if C.kind == "waitcnt":
            vmn, lgn = C.attrs.get("vm"), C.attrs.get("lg")
            if vmn is not None:
                while len(st.vm) > vmn:
                    st.vm.pop(0)
            if lgn is not None:
                if lgn == 0:
                    st.lg.clear()
                else:
                    while len(st.lg) > lgn and not any(e[2] for e in st.lg):
                        st.lg.pop(0)
            out.append(C)
            continue
        if C.kind == "branch" and C.text.startswith("s_branch"):
            st.vm.clear()
            st.lg.clear()
        touch = C.rd | C.wr
        need_vm = need_lg = None
        for j, e in enumerate(st.vm):
            if e[0] & touch:
                need_vm = len(st.vm) - 1 - j
        for j, e in enumerate(st.lg):
            if e[0] & touch:
                need_lg = 0 if any(x[2] for x in st.lg) else len(st.lg) - 1 - j
        if need_vm is not None or need_lg is not None:
            if insert:
                w = mk_wait(need_vm, need_lg)
                out.append(w)
                if need_vm is not None:
                    while len(st.vm) > need_vm:
                        st.vm.pop(0)
                if need_lg is not None:
                    if need_lg == 0:
                        st.lg.clear()
                    else:
                        while len(st.lg) > need_lg:
                            st.lg.pop(0)
            else:
                errs.append((C, need_vm, need_lg))
        if C.kind == "vmem":
            st.vm.append((C.wr if C.attrs.get("load") else set(), C))
            assert len(st.vm) <= 63, "vmcnt overflow"
        elif C.kind == "ds":
            st.lg.append((C.wr, C, False))
            if len(st.lg) > 15:
                st.lg.pop(0)
        elif C.kind == "smem":
            st.lg.append((C.wr, C, True))
        out.append(C)
    return out, errs


def mk_wait(vm=None, lg=None):
    parts = []
    if vm is not None:
        parts.append(f"vmcnt({vm})")
    if lg is not None:
        parts.append(f"lgkmcnt({lg})")
    return Instr("s_waitcnt " + " ".join(parts), "waitcnt", vm=vm, lg=lg)


class K:
    def __init__(self):
        self.ins = []

    def add(self, i):
        self.ins.append(i)
        return i

    def raw(self, text, kind="other", wr=(), rd=(), **attrs):
        return self.add(Instr(text, kind, wr, rd, **attrs))

    def comment(self, t):
        return self.add(Instr(f"; {t}", "comment"))

    def label(self, name, landing=False):
        r = self.add(Instr(f"{name}:", "label"))
        if landing:
            self.waitcnt(vm=0, lg=0)
            self.nop(15)
            self.nop(7)
        return r

    def nop(self, n=0):
        return self.add(Instr(f"s_nop {n}", "nop", n=n))

    def waitcnt(self, vm=None, lg=None):
        return self.add(mk_wait(vm, lg))

    def barrier(self):
        return self.add(Instr("s_barrier", "barrier"))

    def endpgm(self):
        return self.add(Instr("s_endpgm", "other"))

    def v(self, op, dst, *srcs, mods="", extra_wr=(), extra_rd=(), **attrs):
        kind = "trans" if op in TRANS_OPS else "valu"
        opnds = ", ".join(str(x) for x in (dst,) + srcs)
        rd = [s for s in srcs if isinstance(s, Reg)] + list(extra_rd)
        wr = ([dst] if isinstance(dst, Reg) else []) + list(extra_wr)
        if op in ("v_fmac_f32", "v_fmac_f32_e32", "v_pk_fmac_f16"):
            rd.append(dst)
        if op.startswith("v_cndmask") and len(srcs) == 2:
            rd.append(VCC)
        if op.startswith("v_readfirstlane") or op.startswith("v_readlane"):
            attrs["readlane"] = True
        if op.startswith("v_permlane"):
            attrs["permlane"] = True
            rd.append(dst)
            wr.append(srcs[0])
        if "dpp" in op or "row_" in mods or "quad_perm" in mods:
            attrs["dpp"] = True
        return self.add(Instr(f"{op} {opnds}{(' ' + mods) if mods else ''}", kind, wr, rd, **attrs))

    def vcmp(self, op, dst, a, b):
        rd = [x for x in (a, b) if isinstance(x, Reg)]
        return self.add(Instr(f"{op} {dst}, {a}, {b}", "valu", [dst], rd))

    def s(self, op, dst, *srcs, **attrs):
        opnds = ", ".join(str(x) for x in ((dst,) if dst is not None else ()) + srcs)
        rd = [x for x in srcs if isinstance(x, Reg)]
        wr = [dst] if isinstance(dst, Reg) else []
        if op.startswith("s_cmp") or op.startswith("s_bitcmp"):
            rd = [x for x in (dst,) + srcs if isinstance(x, Reg)]
            wr = [SCC]
        elif op in ("s_cselect_b32", "s_cselect_b64", "s_addc_u32", "s_subb_u32"):
            rd.append(SCC)
            if op != "s_cselect_b32" and op != "s_cselect_b64":
                wr.append(SCC)
        elif op in ("s_mov_b32", "s_mov_b64", "s_movk_i32", "s_mul_i32", "s_mul_hi_u32", "s_pack_ll_b32_b16"):
            pass
        else:
            wr.append(SCC)
        return self.add(Instr(f"{op} {opnds}", "salu", wr, rd, **attrs))

    def branch(self, op, target):
        rd = []
        if "scc" in op:
            rd = [SCC]
        elif "vcc" in op:
            rd = [VCC]
        elif "exec" in op:
            rd = [EXEC]
        return self.add(Instr(f"{op} {target}", "branch", [], rd))

    def s_load(self, dst, base, off):
        n = dst.n
        op = {1: "s_load_dword", 2: "s_load_dwordx2", 4: "s_load_dwordx4", 8: "s_load_dwordx8",
              16: "s_load_dwordx16"}[n]
        return self.add(Instr(f"{op} {dst}, {base}, {off}", "smem", [dst], [base]))

    def mfma(self, op, d, a, b, c=None):
        c_ = d if c is None else c
        rd = [a, b] + ([c_] if isinstance(c_, Reg) else [])
        return self.add(Instr(f"{op} {d}, {a}, {b}, {c_}", "mfma", [d], rd, passes=MFMA_PASSES[op],
                              ab=units([a, b]), c=units([c_])))

    def ds_read(self, op, dst, addr, offset=0):
        assert 0 <= offset < 65536, offset
        o = f" offset:{offset}" if offset else ""
        return self.add(Instr(f"{op} {dst}, {addr}{o}", "ds", [dst], [addr]))

    def ds_write(self, op, addr, data, offset=0):
        assert 0 <= offset < 65536, offset
        o = f" offset:{offset}" if offset else ""
        return self.add(Instr(f"{op} {addr}, {data}{o}", "ds", [], [addr, data]))

    def buf_load(self, dst, voff, srd, soff=0, offset=0, flags=""):
        w = {1: "dword", 2: "dwordx2", 3: "dwordx3", 4: "dwordx4"}[dst.n]
        assert 0 <= offset < 4096
        o = f" offset:{offset}" if offset else ""
        f = f" {flags}" if flags else ""
        rd = [voff, srd] + ([soff] if isinstance(soff, Reg) else [])
        return self.add(Instr(f"buffer_load_{w} {dst}, {voff}, {srd}, {soff} offen{o}{f}", "vmem", [dst], rd,
                              load=True))

    def buf_load_u16(self, dst, voff, srd, soff=0, offset=0):
        o = f" offset:{offset}" if offset else ""
        rd = [voff, srd] + ([soff] if isinstance(soff, Reg) else [])
        return self.add(Instr(f"buffer_load_ushort {dst}, {voff}, {srd}, {soff} offen{o}", "vmem", [dst], rd,
                              load=True))

    def buf_load_lds(self, voff, srd, soff=0, offset=0):
        o = f" offset:{offset}" if offset else ""
        rd = [voff, srd, M0] + ([soff] if isinstance(soff, Reg) else [])
        return self.add(Instr(f"buffer_load_dwordx4 {voff}, {srd}, {soff} offen{o} lds", "vmem", [], rd,
                              uses_m0=True, dma=True))

    def buf_store(self, data, voff, srd, soff=0, offset=0, flags=""):
        w = {1: "dword", 2: "dwordx2", 3: "dwordx3", 4: "dwordx4"}[data.n]
        assert 0 <= offset < 4096
        o = f" offset:{offset}" if offset else ""
        f = f" {flags}" if flags else ""
        rd = [data, voff, srd] + ([soff] if isinstance(soff, Reg) else [])
        return self.add(Instr(f"buffer_store_{w} {data}, {voff}, {srd}, {soff} offen{o}{f}", "vmem", [], rd,
                              wide_store=data.n >= 3, data=units([data])))

    def buf_store_u16(self, data, voff, srd, soff=0, offset=0):
        o = f" offset:{offset}" if offset else ""
        rd = [data, voff, srd] + ([soff] if isinstance(soff, Reg) else [])
        return self.add(Instr(f"buffer_store_short {data}, {voff}, {srd}, {soff} offen{o}", "vmem", [], rd))


class Seg:
    def __init__(self, instrs, loop=False):
        self.instrs = instrs
        self.loop = loop


def finalize(segs, verbose=False):
    st = WaitState()
    new_segs = []
    for sg in segs:
        if not sg.loop:
            out, _ = wait_pass(sg.instrs, st, insert=True)
            new_segs.append(Seg(out))
        else:
            body = sg.instrs
            for _it in range(4):
                st1 = st.copy()
                out1, _ = wait_pass(body, st1, insert=True)
                st2 = st1.copy()
                out2, _ = wait_pass(out1, st2, insert=True)
                if len(out2) == len(out1):
                    body = out1
                    st = st2
                    break
                body = out2
            else:
                raise RuntimeError("loop waits did not converge")
            st3 = st.copy()
            o3, e3 = wait_pass(body, st3, insert=False)
            assert not e3, e3
            st = st3
            new_segs.append(Seg(body, True))
    final = []
    prefix = []
    for sg in new_segs:
        if not sg.loop:
            fx = fix_hazards(sg.instrs, prefix=prefix[-40:])
        else:
            body = sg.instrs
            for _it in range(4):
                fx = fix_hazards(body, prefix=prefix[-40:])
                fx2 = fix_hazards(fx, prefix=fx[-40:])
                body = fx2
                if len(fx2) == len(fx):
                    break
            fx = body
        final.append(Seg(fx, sg.loop))
        prefix = prefix + fx
    trace = []
    for sg in final:
        trace += sg.instrs * (3 if sg.loop else 1)
    errs = check_hazards(trace)
    if errs:
        for e in errs[:10]:
            print("HAZARD", e[1], "->", e[2], "need", e[3], "have", e[4])
        raise RuntimeError("hazard violations")
    st = WaitState()
    _, werrs = wait_pass(trace, st, insert=False)
    if werrs:
        for e in werrs[:10]:
            print("WAIT", e)
        raise RuntimeError("waitcnt violations")
    flat = []
    for sg in final:
        flat += sg.instrs
    return flat


def render(instrs):
    lines = []
    for i in instrs:
        if i.kind == "label":
            lines.append(i.text)
        else:
            lines.append("    " + i.text)
    return "\n".join(lines)
```

```python
from asmlib import *

MiB = 1 << 20
WS_XN = 0 * MiB
WS_Q = 4 * MiB
WS_H = 20 * MiB
WS_O = 34 * MiB
WS_S = 50 * MiB
WS_G = 54 * MiB
SZ_XN = 2048 * 1024 * 2
SZ_Q = 2048 * 4096 * 2
SZ_H = 2048 * 3584 * 2
SZ_O = 2048 * 4096 * 2
SZ_S = 2048 * 1024 * 2
SZ_G = 2048 * 1024 * 2

KA_X, KA_K, KA_V, KA_WQ, KA_WO, KA_BX, KA_W1, KA_W2, KA_OUT, KA_DBG, KA_WS = range(11)
SZ_X = 2048 * 1024 * 2
SZ_KV = 4 * 2048 * 128 * 2
SZ_WQ = 1024 * 4096 * 2
SZ_WO = 4096 * 1024 * 2
SZ_W1 = 1024 * 3584 * 2
SZ_W2 = 3584 * 1024 * 2
SZ_OUT = 2048 * 1024 * 2

KARG = S(0, 2)
WGID = S(2)


def mk_srd(k, srd, base, off, size):
    if isinstance(off, int) and off == 0:
        k.s("s_mov_b32", srd[0], base[0])
        k.s("s_and_b32", srd[1], base[1], 0xFFFF)
    else:
        k.s("s_add_u32", srd[0], base[0], off)
        k.s("s_addc_u32", srd[1], base[1], 0)
        k.s("s_and_b32", srd[1], srd[1], 0xFFFF)
    k.s("s_mov_b32", srd[2], size)
    k.s("s_mov_b32", srd[3], 0x00020000)


def wave_sum(k, x, tmp, s0, s1):
    for off in (0x041F, 0x081F, 0x101F, 0x201F, 0x401F):
        k.add(Instr(f"ds_swizzle_b32 {tmp}, {x} offset:{off:#x}", "ds", [tmp], [x]))
        k.v("v_add_f32", x, x, tmp)
    k.v("v_readlane_b32", s0, x, 0)
    k.v("v_readlane_b32", s1, x, 32)
    k.v("v_mov_b32", x, s0)
    k.v("v_add_f32", x, s1, x)


def bf16_round_scalar(k, x, tmp):
    k.v("v_cvt_pk_bf16_f32", tmp, x, x)
    k.v("v_lshlrev_b32", x, 16, tmp)


def f32bits(x):
    import struct
    return "0x%08x" % struct.unpack("<I", struct.pack("<f", x))[0]
```

```python
from common import *
from k_elem import Neg

MF = "v_mfma_f32_32x32x16_bf16"
NBLK = 16
KBUF, VBUF = 0, 32768
LDS_BYTES = 32768 + 3 * 16384

tid = V(0)
Qf = [V(4 + 4 * s, 4) for s in range(8)]
Oacc = [V(36 + 16 * db, 16) for db in range(4)]
Sset = [V(100, 16), V(116, 16)]
Pset = [V(132, 8), V(140, 8)]
Kf = [V(148 + 4 * s, 4) for s in range(8)]
Vf = [[V(180 + (db * 2 + ksx) * 4, 4) for ksx in range(2)] for db in range(4)]
X = [V(212 + i) for i in range(8)]
vM, l0, l1, lb0, lb1, mx, tA, tB = (V(220 + i) for i in range(8))
adK = [V(228 + s) for s in range(8)]
adV = [V(236 + db) for db in range(4)]
voK = [V(240), V(241)]
voV = [V(242), V(243)]
vQO = V(244)
T_ = [V(245 + i) for i in range(7)]
NVGPR = 252

srdQ, srdK, srdV, srdO = S(4, 4), S(8, 4), S(12, 4), S(16, 4)
sC, sWv, sOff = S(20), S(21), S(22)
sT = [S(24 + i) for i in range(8)]
sP = S(32, 8)
SCALE_LOG2E = 0.08838834764831845 * 1.4426950408889634


def sm_common(j):
    k = K()
    Sj, Pj = Sset[j & 1], Pset[j & 1]

    def tail(g):
        b = (g & 1) * 4
        if g == 0:
            k.v("v_add_f32", lb0, X[b], X[b + 1])
            k.v("v_add_f32", lb1, X[b + 2], X[b + 3])
        else:
            k.v("v_add_f32", lb0, lb0, X[b])
            k.v("v_add_f32", lb1, lb1, X[b + 1])
            k.v("v_add_f32", lb0, lb0, X[b + 2])
            k.v("v_add_f32", lb1, lb1, X[b + 3])
        k.v("v_cvt_pk_bf16_f32", Pj[2 * g], X[b], X[b + 1])
        k.v("v_cvt_pk_bf16_f32", Pj[2 * g + 1], X[b + 2], X[b + 3])

    for g in range(4):
        b = (g & 1) * 4
        for e in range(4):
            k.v("v_fma_f32", X[b + e], Sj[4 * g + e], sC, Neg(vM))
        if g == 0:
            k.v("v_max3_f32", mx, Sj[0], Sj[1], Sj[2])
        else:
            k.v("v_max3_f32", mx, mx, Sj[4 * g - 1], Sj[4 * g])
        for e in range(4):
            k.v("v_exp_f32", X[b + e], X[b + e])
        k.v("v_max3_f32", mx, mx, Sj[4 * g + 1], Sj[4 * g + 2])
        if g > 0:
            tail(g - 1)
    k.v("v_max_f32", mx, mx, Sj[15])
    tail(3)
    k.v("v_fma_f32", mx, mx, sC, Neg(vM))
    k.vcmp("v_cmp_lt_f32", VCC, 8.0, mx)
    return k.ins


def exact_max(k, j):
    Sj = Sset[j & 1]
    k.v("v_max3_f32", mx, Sj[0], Sj[1], Sj[2])
    for i in range(3, 15, 2):
        k.v("v_max3_f32", mx, mx, Sj[i], Sj[i + 1])
    k.v("v_max_f32", mx, mx, Sj[15])
    k.v("v_mov_b32", tA, mx)
    k.v("v_permlane32_swap_b32", mx, tA)
    k.v("v_max_f32", mx, mx, tA)


def sm_first():
    k = K()
    exact_max(k, 0)
    k.v("v_mul_f32", vM, sC, mx)
    ins = k.ins + sm_common(0)
    return [i for i in ins if not i.text.startswith("v_cmp_lt_f32")]


def fixup(j):
    k = K()
    Sj, Pj = Sset[j & 1], Pset[j & 1]
    k.label(f"attn_fix_{j}", landing=True)
    exact_max(k, j)
    k.v("v_mul_f32", tA, sC, mx)
    k.v("v_max_f32", tA, vM, tA)
    k.v("v_sub_f32", tB, vM, tA)
    k.v("v_exp_f32", tB, tB)
    k.v("v_mov_b32", vM, tA)
    for db in range(4):
        for i in range(16):
            k.v("v_mul_f32", Oacc[db][i], Oacc[db][i], tB)
    k.v("v_mul_f32", l0, l0, tB)
    k.v("v_mul_f32", l1, l1, tB)
    for g in range(4):
        for e in range(4):
            k.v("v_fma_f32", X[e], Sj[4 * g + e], sC, Neg(vM))
        for e in range(4):
            k.v("v_exp_f32", X[e], X[e])
        if g == 0:
            k.v("v_add_f32", lb0, X[0], X[1])
            k.v("v_add_f32", lb1, X[2], X[3])
        else:
            k.v("v_add_f32", lb0, lb0, X[0])
            k.v("v_add_f32", lb1, lb1, X[1])
            k.v("v_add_f32", lb0, lb0, X[2])
            k.v("v_add_f32", lb1, lb1, X[3])
        k.v("v_cvt_pk_bf16_f32", Pj[2 * g], X[0], X[1])
        k.v("v_cvt_pk_bf16_f32", Pj[2 * g + 1], X[2], X[3])
    k.nop(3)
    k.branch("s_branch", f"attn_ret_{j}")
    return k.ins


def k_reads(b):
    k = K()
    off = ((b >> 1) & 1) * 16384 + (b & 1) * 8192
    for s in range(8):
        k.ds_read("ds_read_b128", Kf[s], adK[s], off)
    return k.ins


def v_reads(b):
    k = K()
    st = b >> 1
    base = (st % 3) * 16384 + (b & 1) * 8192
    for db in range(4):
        for ksx in range(2):
            for tt in range(2):
                k.ds_read("ds_read_b64_tr_b16", Vf[db][ksx].sub(2 * tt, 2), adV[db],
                          base + (16 * ksx + 8 * tt) * 256)
    return k.ins


def dma_stage(which, t):
    k = K()
    if which == "K":
        lbase, vo, srd = KBUF + (t & 1) * 16384, voK, srdK
    else:
        lbase, vo, srd = VBUF + (t % 3) * 16384, voV, srdV
    k.s("s_mov_b32", sOff, t * 16384)
    for j in range(2):
        k.s("s_add_u32", M0, sWv, lbase + j * 1024)
        k.buf_load_lds(vo[j], srd, sOff)
    return k.ins


def qk(b):
    k = K()
    S_ = Sset[b & 1]
    for s in range(8):
        k.mfma(MF, S_, Kf[s], Qf[s], 0 if s == 0 else None)
    return k.ins


def pv(b):
    k = K()
    P_ = Pset[b & 1]
    for ksx in range(2):
        for db in range(4):
            k.mfma(MF, Oacc[db], Vf[db][ksx], P_.sub(4 * ksx, 4))
    return k.ins


def interleave(k, mfmas, fill_lists):
    n = len(mfmas)
    if n == 0:
        for ins, lo, hi in fill_lists:
            for i in ins:
                k.add(i)
        return
    slots = [[] for _ in range(n)]
    for ins, lo, hi in fill_lists:
        m = len(ins)
        for idx, i in enumerate(ins):
            slots[lo + (idx * (hi - lo)) // m].append(i)
    for m, sl in zip(mfmas, slots):
        k.add(m)
        for i in sl:
            k.add(i)


def gen_attn():
    name = "attn_kernel"
    NWG = 256
    k = K()
    k.s("s_cmp_ge_u32", WGID, NWG)
    k.branch("s_cbranch_scc1", f"{name}_end")
    pws, pk, pvv = sP.sub(0, 2), sP.sub(2, 2), sP.sub(4, 2)
    k.s_load(pws, KARG, KA_WS * 8)
    k.s_load(pk, KARG, KA_K * 8)
    k.s_load(pvv, KARG, KA_V * 8)
    xcd, idx, g, idd, head, qblk = sT[0], sT[1], sT[2], sT[3], sT[4], sT[5]
    k.s("s_and_b32", xcd, WGID, 7)
    k.s("s_lshr_b32", idx, WGID, 3)
    k.s("s_lshr_b32", g, xcd, 1)
    k.s("s_and_b32", idd, xcd, 1)
    k.s("s_lshl_b32", idd, idd, 5)
    k.s("s_add_u32", idd, idd, idx)
    k.s("s_lshr_b32", head, idd, 3)
    k.s("s_lshl_b32", sT[6], g, 3)
    k.s("s_add_u32", head, head, sT[6])
    k.s("s_and_b32", qblk, idd, 7)
    toff = sT[6]
    k.s("s_lshl_b32", toff, qblk, 21)
    k.s("s_lshl_b32", sT[7], head, 8)
    k.s("s_add_u32", toff, toff, sT[7])
    k.s("s_add_u32", sT[7], toff, WS_Q)
    mk_srd(k, srdQ, pws, sT[7], 0)
    k.s("s_sub_u32", srdQ[2], SZ_Q, toff)
    k.s("s_add_u32", sT[7], toff, WS_O)
    mk_srd(k, srdO, pws, sT[7], 0)
    k.s("s_sub_u32", srdO[2], SZ_O, toff)
    k.s("s_lshl_b32", sT[7], g, 19)
    k.s("s_add_u32", sT[7], sT[7], 1536 * 256)
    mk_srd(k, srdK, pk, sT[7], 512 * 256)
    mk_srd(k, srdV, pvv, sT[7], 512 * 256)
    k.s("s_mov_b32", sC, f32bits(SCALE_LOG2E))
    lane, wv = T_[0], T_[1]
    k.v("v_and_b32", lane, 63, tid)
    k.v("v_lshrrev_b32", wv, 6, tid)
    k.v("v_readfirstlane_b32", sT[0], wv)
    k.s("s_lshl_b32", sWv, sT[0], 11)
    t0, t1, t2 = T_[2], T_[3], T_[4]
    for j in range(2):
        k.v("v_lshrrev_b32", t0, 4, lane)
        k.v("v_lshl_add_u32", t0, wv, 3, t0)
        k.v("v_add_u32", t0, 4 * j, t0)
        k.v("v_and_b32", t1, 15, lane)
        k.v("v_and_b32", t2, 15, t0)
        k.v("v_xor_b32", t2, t2, t1)
        k.v("v_lshlrev_b32", t2, 4, t2)
        k.v("v_lshl_add_u32", voK[j], t0, 8, t2)
        k.v("v_and_b32", t2, 3, t0)
        k.v("v_lshlrev_b32", t2, 2, t2)
        k.v("v_xor_b32", t2, t2, t1)
        k.v("v_lshlrev_b32", t2, 4, t2)
        k.v("v_lshl_add_u32", voV[j], t0, 8, t2)
    for which, t in (("K", 0), ("V", 0), ("K", 1), ("V", 1), ("V", 2)):
        for i in dma_stage(which, t):
            k.add(i)
    k.v("v_and_b32", t0, 31, lane)
    k.v("v_lshl_add_u32", t0, wv, 5, t0)
    k.v("v_lshrrev_b32", t1, 5, lane)
    k.v("v_lshlrev_b32", t1, 4, t1)
    k.v("v_lshl_add_u32", vQO, t0, 13, t1)
    for s in range(8):
        k.buf_load(Qf[s], vQO, srdQ, 0, offset=32 * s)
    hh, r31, l15 = T_[2], T_[3], T_[4]
    k.v("v_lshrrev_b32", hh, 5, lane)
    k.v("v_and_b32", r31, 31, lane)
    k.v("v_and_b32", l15, 15, lane)
    for s in range(8):
        k.v("v_add_u32", T_[5], 2 * s, hh)
        k.v("v_xor_b32", T_[5], T_[5], l15)
        k.v("v_lshlrev_b32", T_[5], 4, T_[5])
        k.v("v_lshl_add_u32", adK[s], r31, 8, T_[5])
    rr, cc, dsub = T_[2], T_[3], T_[4]
    k.v("v_bfe_u32", rr, lane, 2, 2)
    k.v("v_and_b32", cc, 3, lane)
    k.v("v_bfe_u32", dsub, lane, 4, 1)
    k.v("v_lshrrev_b32", T_[5], 5, lane)
    k.v("v_lshl_add_u32", T_[5], T_[5], 2, rr)
    k.v("v_lshlrev_b32", T_[5], 8, T_[5])
    k.v("v_and_b32", T_[6], 1, cc)
    k.v("v_lshl_add_u32", T_[5], T_[6], 3, T_[5])
    k.v("v_lshrrev_b32", T_[6], 1, cc)
    k.v("v_lshl_add_u32", T_[6], dsub, 1, T_[6])
    k.v("v_lshl_add_u32", T_[5], T_[6], 4, T_[5])
    k.v("v_add_u32", T_[5], VBUF, T_[5])
    for db in range(4):
        k.v("v_xor_b32", T_[6], db, rr)
        k.v("v_lshl_add_u32", adV[db], T_[6], 6, T_[5])
    for db in range(4):
        for i in range(16):
            k.v("v_mov_b32", Oacc[db][i], 0)
    k.v("v_mov_b32", l0, 0)
    k.v("v_mov_b32", l1, 0)
    k.waitcnt(vm=16)
    k.barrier()
    for i in k_reads(0):
        k.add(i)

    for it in range(NBLK + 2):
        k.comment(f"---- iteration {it}")
        mf_qk = qk(it) if it < NBLK else []
        mf_pv = pv(it - 2) if 0 <= it - 2 < NBLK else []
        j = it - 1
        if j == 0:
            val = sm_first()
        elif 0 < j < NBLK:
            val = sm_common(j)
        else:
            val = []
        vr = v_reads(it - 2) if 0 <= it - 2 < NBLK else []
        kr = k_reads(it + 1) if it + 1 < NBLK else []
        dm = []
        if it & 1:
            t = (it - 1) // 2
            if t + 2 < 8:
                dm += dma_stage("K", t + 2)
            if t >= 2 and t + 1 < 8:
                dm += dma_stage("V", t + 1)
        mfmas = mf_qk + mf_pv
        nq, n = len(mf_qk), len(mf_qk) + len(mf_pv)
        fills = []
        if n:
            fills.append((val, 0, n))
            fills.append((vr, 0, max(nq, 1)))
            fills.append((kr, nq if nq < n else max(n - 1, 0), n))
            fills.append((dm, min(nq, n - 1), n))
            if nq == 0 and vr:
                for i in vr:
                    k.add(i)
                fills[1] = ([], 0, 1)
        interleave(k, mfmas, [f for f in fills if f[0]])
        if 1 <= j < NBLK:
            k.branch("s_cbranch_vccnz", f"attn_fix_{j}")
            k.label(f"attn_ret_{j}")
        if 0 <= j < NBLK:
            k.v("v_add_f32", l0, l0, lb0)
            k.v("v_add_f32", l1, l1, lb1)
        if (it & 1) == 0 and it <= 14:
            k.waitcnt(vm=0, lg=0)
            k.barrier()

    k.v("v_add_f32", l0, l0, l1)
    k.v("v_mov_b32", tA, l0)
    k.v("v_permlane32_swap_b32", l0, tA)
    k.v("v_add_f32", l0, l0, tA)
    k.v("v_rcp_f32", tB, l0)
    cnt = 0
    for db in range(4):
        for pp in range(2):
            base = 100 + (cnt % 4) * 12
            cnt += 1
            tt, T = V(base, 8), V(base + 8, 4)
            for i in range(8):
                k.v("v_mul_f32", tt[i], Oacc[db][8 * pp + i], tB)
            for q in range(4):
                k.v("v_cvt_pk_bf16_f32", T[q], tt[2 * q], tt[2 * q + 1])
            k.v("v_permlane32_swap_b32", T[0], T[2])
            k.v("v_permlane32_swap_b32", T[1], T[3])
            k.buf_store(T, vQO, srdO, 0, offset=64 * db + 32 * pp)
    k.branch("s_branch", f"{name}_end")
    for j in range(1, NBLK):
        for i in fixup(j):
            k.add(i)
    k.label(f"{name}_end")
    k.endpgm()
    return dict(name=name, segs=[Seg(k.ins)], vgpr=NVGPR, sgpr=48, grid=(NWG, 1, 1), block=(512, 1, 1),
                lds=LDS_BYTES)
```

```python
from common import *


def gen_ln():
    k = K()
    name = "ln_kernel"
    NWG = 512
    k.s("s_cmp_ge_u32", WGID, NWG)
    k.branch("s_cbranch_scc1", f"{name}_end")
    px, pws = S(4, 2), S(6, 2)
    k.s_load(px, KARG, KA_X * 8)
    k.s_load(pws, KARG, KA_WS * 8)
    srdx, srdo = S(8, 4), S(12, 4)
    tid, voff = V(0), V(1)
    k.v("v_lshrrev_b32", V(2), 6, tid)
    k.s("s_lshl_b32", S(16), WGID, 2)
    k.v("v_add_u32", V(2), S(16), V(2))
    k.v("v_lshlrev_b32", V(2), 11, V(2))
    k.v("v_and_b32", V(3), 63, tid)
    k.v("v_lshlrev_b32", V(3), 5, V(3))
    k.v("v_add_u32", voff, V(2), V(3))
    mk_srd(k, srdx, px, 0, SZ_X)
    mk_srd(k, srdo, pws, WS_XN, SZ_XN)
    raw = V(4, 8)
    k.buf_load(raw.sub(0, 4), voff, srdx)
    k.buf_load(raw.sub(4, 4), voff, srdx, offset=16)
    xf = V(12, 16)
    for i in range(8):
        k.v("v_lshlrev_b32", xf[2 * i], 16, raw[i])
        k.v("v_and_b32", xf[2 * i + 1], 0xFFFF0000, raw[i])
    acc, tmp, mean, mbf = V(28), V(29), V(30), V(31)
    t = V(32, 8)
    for i in range(8):
        k.v("v_add_f32", t[i], xf[2 * i], xf[2 * i + 1])
    for i in range(4):
        k.v("v_add_f32", t[i], t[i], t[i + 4])
    k.v("v_add_f32", t[0], t[0], t[2])
    k.v("v_add_f32", t[1], t[1], t[3])
    k.v("v_add_f32", acc, t[0], t[1])
    wave_sum(k, acc, tmp, S(18), S(19))
    k.v("v_mul_f32", mean, 1.0 / 1024, acc)
    d = V(40, 16)
    for i in range(16):
        k.v("v_sub_f32", d[i], xf[i], mean)
    for i in range(8):
        k.v("v_mul_f32", t[i], d[2 * i], d[2 * i])
        k.v("v_fmac_f32", t[i], d[2 * i + 1], d[2 * i + 1])
    for i in range(4):
        k.v("v_add_f32", t[i], t[i], t[i + 4])
    k.v("v_add_f32", t[0], t[0], t[2])
    k.v("v_add_f32", t[1], t[1], t[3])
    k.v("v_add_f32", acc, t[0], t[1])
    wave_sum(k, acc, tmp, S(18), S(19))
    var = V(56)
    k.v("v_mul_f32", var, 1.0 / 1024, acc)
    k.v("v_mov_b32", mbf, mean)
    bf16_round_scalar(k, mbf, tmp)
    bf16_round_scalar(k, var, tmp)
    k.v("v_add_f32", var, 1e-5, var)
    bf16_round_scalar(k, var, tmp)
    k.v("v_sqrt_f32", var, var)
    bf16_round_scalar(k, var, tmp)
    r = var
    rinv = V(57)
    k.v("v_rcp_f32", rinv, r)
    outp = V(60, 8)
    for i in range(8):
        a, b = d[2 * i], d[2 * i + 1]
        k.v("v_sub_f32", a, xf[2 * i], mbf)
        k.v("v_sub_f32", b, xf[2 * i + 1], mbf)
        k.v("v_cvt_pk_bf16_f32", tmp, a, b)
        k.v("v_lshlrev_b32", a, 16, tmp)
        k.v("v_and_b32", b, 0xFFFF0000, tmp)
        q0a, q0b, ea, eb = t[0], t[1], t[2], t[3]
        k.v("v_mul_f32", q0a, a, rinv)
        k.v("v_mul_f32", q0b, b, rinv)
        k.v("v_fma_f32", ea, Neg(q0a), r, a)
        k.v("v_fma_f32", eb, Neg(q0b), r, b)
        k.v("v_fma_f32", q0a, ea, rinv, q0a)
        k.v("v_fma_f32", q0b, eb, rinv, q0b)
        k.v("v_cvt_pk_bf16_f32", outp[i], q0a, q0b)
    k.buf_store(outp.sub(0, 4), voff, srdo)
    k.buf_store(outp.sub(4, 4), voff, srdo, offset=16)
    k.label(f"{name}_end")
    k.endpgm()
    return dict(name=name, segs=[Seg(k.ins)], vgpr=72, sgpr=24, grid=(NWG, 1, 1), block=(256, 1, 1), lds=0)


class Neg(Reg):
    def __init__(self, r):
        super().__init__(r.kind, r.idx, r.n)

    def __str__(self):
        return "-" + super().__str__()


def gen_combine(name):
    k = K()
    NWG = 1024
    k.s("s_cmp_ge_u32", WGID, NWG)
    k.branch("s_cbranch_scc1", f"{name}_end")
    px, pws, pout = S(4, 2), S(6, 2), S(20, 2)
    k.s_load(px, KARG, KA_X * 8)
    k.s_load(pws, KARG, KA_WS * 8)
    k.s_load(pout, KARG, KA_OUT * 8)
    tid, voff = V(0), V(1)
    k.s("s_lshl_b32", S(24), WGID, 12)
    k.v("v_lshlrev_b32", voff, 4, tid)
    k.v("v_add_u32", voff, S(24), voff)
    srdx, srds, srdg, srdo = S(8, 4), S(12, 4), S(16, 4), S(28, 4)
    mk_srd(k, srdx, px, 0, SZ_X)
    mk_srd(k, srds, pws, WS_S, SZ_S)
    mk_srd(k, srdg, pws, WS_G, SZ_G)
    mk_srd(k, srdo, pout, 0, SZ_OUT)
    rx, rs, rg = V(4, 4), V(8, 4), V(12, 4)
    k.buf_load(rg, voff, srdg)
    k.buf_load(rs, voff, srds)
    k.buf_load(rx, voff, srdx)
    outp = V(16, 4)
    MASK = 0xFFFF0000
    for i in range(4):
        b = 20 + 12 * i
        z0, z1, e0, e1, t, s0, s1, x0, x1 = (V(b + j) for j in range(9))
        k.v("v_lshlrev_b32", z0, 16, rg[i])
        k.v("v_and_b32", z1, MASK, rg[i])
        k.v("v_mul_f32", e0, -1.4426950408889634, z0)
        k.v("v_mul_f32", e1, -1.4426950408889634, z1)
        k.v("v_exp_f32", e0, e0)
        k.v("v_exp_f32", e1, e1)
        k.v("v_add_f32", e0, 1.0, e0)
        k.v("v_add_f32", e1, 1.0, e1)
        k.v("v_rcp_f32", e0, e0)
        k.v("v_rcp_f32", e1, e1)
        k.v("v_mul_f32", z0, z0, e0)
        k.v("v_mul_f32", z1, z1, e1)
        k.v("v_cvt_pk_bf16_f32", t, z0, z1)
        k.v("v_lshlrev_b32", z0, 16, t)
        k.v("v_and_b32", z1, MASK, t)
        k.v("v_lshlrev_b32", s0, 16, rs[i])
        k.v("v_and_b32", s1, MASK, rs[i])
        k.v("v_mul_f32", s0, s0, z0)
        k.v("v_mul_f32", s1, s1, z1)
        k.v("v_cvt_pk_bf16_f32", t, s0, s1)
        k.v("v_lshlrev_b32", s0, 16, t)
        k.v("v_and_b32", s1, MASK, t)
        k.v("v_lshlrev_b32", x0, 16, rx[i])
        k.v("v_and_b32", x1, MASK, rx[i])
        k.v("v_add_f32", x0, x0, s0)
        k.v("v_add_f32", x1, x1, s1)
        k.v("v_cvt_pk_bf16_f32", outp[i], x0, x1)
    k.buf_store(outp, voff, srdo)
    k.label(f"{name}_end")
    k.endpgm()
    return dict(name=name, segs=[Seg(k.ins)], vgpr=72, sgpr=32, grid=(NWG, 1, 1), block=(256, 1, 1), lds=0)
```

```python
from common import *

MF = "v_mfma_f32_16x16x32_bf16"
BK = 64


class G:
    pass


def gen_gemm(name, BM, BN, WM, WN, decode, nwg, relu_possible):
    g = G()
    NW = WM * WN
    assert NW == 4
    TM, TN = BM // WM, BN // WN
    NMB, NNB = TM // 16, TN // 16
    PA, PW = BK * 2, BN * 2
    A_BYTES, W_BYTES = BM * PA, BK * PW
    STAGE = A_BYTES + W_BYTES
    cntA, cntW = A_BYTES // 1024 // NW, W_BYTES // 1024 // NW
    srdA, srdW, srdC = S(4, 4), S(8, 4), S(12, 4)
    sA, sW, stepW, sLoop = S(16), S(17), S(18), S(19)
    sLda, sLdw, sLdc, sRelu = S(20), S(21), S(22), S(23)
    sWvA, sWvW = S(24), S(25)
    sT = [S(26 + i) for i in range(6)]
    sP = S(32, 16)
    tid = V(0)
    FS = (NNB + NMB) * 4
    Wf = [[V(4 + X * FS + nb * 4, 4) for nb in range(NNB)] for X in range(2)]
    Af = [[V(4 + X * FS + NNB * 4 + mb * 4, 4) for mb in range(NMB)] for X in range(2)]
    vb = 4 + 2 * FS
    voA = [V(vb + j) for j in range(cntA)]
    vb += cntA
    voW = [V(vb + j) for j in range(cntW)]
    vb += cntW
    adA = [[V(vb + st * 2 + ks) for ks in range(2)] for st in range(2)]
    vb += 4
    adW = [[V(vb + st * NNB + nb) for nb in range(NNB)] for st in range(2)]
    vb += 2 * NNB
    tmp = [V(vb + i) for i in range(12)]
    vb += 12
    nvgpr = vb
    acc = [[A((nb * NMB + mb) * 4, 4) for mb in range(NMB)] for nb in range(NNB)]
    nagpr = NNB * NMB * 4

    k = K()
    k.s("s_cmp_ge_u32", WGID, nwg)
    k.branch("s_cbranch_scc1", f"{name}_end")
    decode(k, dict(srdA=srdA, srdW=srdW, srdC=srdC, sLda=sLda, sLdw=sLdw, sLdc=sLdc, sRelu=sRelu,
                   sLoop=sLoop, sT=sT, sP=sP, BM=BM, BN=BN))
    lane, wv = tmp[0], tmp[1]
    k.v("v_and_b32", lane, 63, tid)
    k.v("v_lshrrev_b32", wv, 6, tid)
    k.v("v_readfirstlane_b32", sT[0], wv)
    k.s("s_mul_i32", sWvA, sT[0], cntA * 1024)
    k.s("s_mul_i32", sWvW, sT[0], cntW * 1024)
    k.s("s_mov_b32", sA, 0)
    k.s("s_mov_b32", sW, 0)
    k.s("s_lshl_b32", stepW, sLdw, 6)

    def dma_voffs(dst, P, cnt, is_w):
        RPI = 1024 // P
        cpr = P // 16
        lg = cpr.bit_length() - 1
        pc, rowb, row, t, t2 = tmp[2], tmp[3], tmp[4], tmp[5], tmp[6]
        k.v("v_and_b32", pc, cpr - 1, lane)
        k.v("v_lshrrev_b32", rowb, lg, lane)
        k.v("v_mad_u32_u24", rowb, wv, cnt * RPI, rowb)
        for j in range(cnt):
            k.v("v_add_u32", row, j * RPI, rowb)
            if not is_w:
                k.v("v_bfe_u32", t, row, 1, 3)
                k.v("v_xor_b32", t, t, pc)
                k.v("v_lshlrev_b32", t, 4, t)
                k.v("v_mad_u32_u24", dst[j], row, sLda, t)
            else:
                k.v("v_and_b32", t, 3, row)
                k.v("v_bfe_u32", t2, row, 3, 1)
                k.v("v_lshl_or_b32", t, t2, 2, t)
                k.v("v_lshrrev_b32", t2, 1, pc)
                k.v("v_xor_b32", t, t, t2)
                k.v("v_lshlrev_b32", t, 5, t)
                k.v("v_and_b32", t2, 1, pc)
                k.v("v_lshl_or_b32", t, t2, 4, t)
                k.v("v_mad_u32_u24", dst[j], row, sLdw, t)

    dma_voffs(voA, PA, cntA, False)
    dma_voffs(voW, PW, cntW, True)

    def dma_group(kk, stage_par):
        out = []
        for j in range(cntA):
            kb = K()
            kb.s("s_add_u32", M0, sWvA, stage_par * STAGE + j * 1024)
            kb.buf_load_lds(voA[j], srdA, sA)
            out.append(kb.ins)
        for j in range(cntW):
            kb = K()
            kb.s("s_add_u32", M0, sWvW, stage_par * STAGE + A_BYTES + j * 1024)
            kb.buf_load_lds(voW[j], srdW, sW)
            out.append(kb.ins)
        return out

    def adv_k():
        kb = K()
        kb.s("s_add_u32", sA, sA, BK * 2)
        kb.s("s_add_u32", sW, sW, stepW)
        return kb.ins

    for st in range(2):
        for pr in dma_group(k, st):
            k.add(pr[0])
            k.add(pr[1])
        for i in adv_k():
            k.add(i)

    wm, wn = tmp[2], tmp[3]
    k.v("v_lshrrev_b32", wm, (WN.bit_length() - 1), wv)
    k.v("v_and_b32", wn, WN - 1, wv)
    l15, lq, t, t2 = tmp[4], tmp[5], tmp[6], tmp[7]
    k.v("v_and_b32", l15, 15, lane)
    k.v("v_lshrrev_b32", lq, 4, lane)
    k.v("v_mul_u32_u24", t, TM, wm)
    k.v("v_add_u32", t, t, l15)
    k.v("v_lshlrev_b32", t, 7, t)
    k.v("v_lshrrev_b32", t2, 1, l15)
    k.v("v_xor_b32", t2, t2, lq)
    k.v("v_lshl_add_u32", adA[0][0], t2, 4, t)
    k.v("v_xor_b32", adA[0][1], 64, adA[0][0])
    for ks in range(2):
        k.v("v_add_u32", adA[1][ks], STAGE, adA[0][ks])
    gq, rr, cc, f = tmp[8], tmp[9], tmp[10], tmp[11]
    k.v("v_lshrrev_b32", gq, 4, lane)
    k.v("v_bfe_u32", rr, lane, 2, 2)
    k.v("v_and_b32", cc, 3, lane)
    k.v("v_and_b32", f, 1, gq)
    k.v("v_lshl_or_b32", f, f, 2, rr)
    k.v("v_lshl_add_u32", t, gq, 3, rr)
    k.v("v_mul_u32_u24", t, PW, t)
    k.v("v_lshl_add_u32", t, cc, 3, t)
    k.v("v_add_u32", t, A_BYTES, t)
    for nb in range(NNB):
        k.v("v_mul_u32_u24", t2, NNB, wn)
        k.v("v_add_u32", t2, nb, t2)
        k.v("v_xor_b32", t2, t2, f)
        k.v("v_lshl_add_u32", adW[0][nb], t2, 5, t)
        k.v("v_add_u32", adW[1][nb], STAGE, adW[0][nb])
    for nb in range(NNB):
        for mb in range(NMB):
            for r in range(4):
                k.v("v_accvgpr_write_b32", acc[nb][mb][r], 0)

    def reads(X, st, ks):
        out = []
        seq = []
        for i in range(max(NMB, NNB)):
            if i < NNB:
                seq.append(("W", i))
            if i < NMB:
                seq.append(("A", i))
        for typ, i in seq:
            if typ == "A":
                kb = K()
                kb.ds_read("ds_read_b128", Af[X][i], adA[st][ks], i * 16 * PA)
                out += kb.ins
            else:
                for tt in range(2):
                    kb = K()
                    kb.ds_read("ds_read_b64_tr_b16", Wf[X][i].sub(2 * tt, 2), adW[st][i],
                               ks * 32 * PW + tt * 4 * PW)
                    out += kb.ins
        return out

    k.waitcnt(vm=cntA + cntW)
    k.barrier()
    for i in reads(0, 0, 0):
        k.add(i)
    pro = k.ins

    def substep(X, rd, dmas, extra):
        kb = K()
        mf = []
        for nb in range(NNB):
            for mb in range(NMB):
                mf.append((nb, mb))
        n = len(mf)
        slots = [[] for _ in range(n)]
        span = max(1, (n * 3) // 4)
        for i, r in enumerate(rd):
            slots[(i * span) // max(1, len(rd))].append(r)
        for i, pr in enumerate(dmas):
            pos = 1 + (i * (n - 3)) // max(1, len(dmas))
            slots[pos].append(pr[0])
            slots[pos + 1].insert(0, pr[1])
        for e in extra:
            slots[n - 1].append(e)
        for i, (nb, mb) in enumerate(mf):
            kb.mfma(MF, acc[nb][mb], Wf[X][nb], Af[X][mb])
            for s_ in slots[i]:
                kb.add(s_)
        return kb.ins

    def stage_code(par, do_dma, do_next_read, last):
        out = []
        out += substep(0, reads(1, par, 1), [], [])
        if not last:
            kb = K()
            kb.waitcnt(vm=0, lg=0)
            kb.barrier()
            out += kb.ins
        rd = reads(0, par ^ 1, 0) if do_next_read else []
        dm = dma_group(None, par) if do_dma else []
        ex = adv_k() if do_dma else []
        out += substep(1, rd, dm, ex)
        return out

    body = K()
    body.label(f"{name}_loop")
    for i in stage_code(0, True, True, False) + stage_code(1, True, True, False):
        body.add(i)
    body.s("s_sub_u32", sLoop, sLoop, 1)
    body.s("s_cmp_lg_u32", sLoop, 0)
    body.branch("s_cbranch_scc1", f"{name}_loop")

    tail = K()
    for i in stage_code(0, False, True, False) + stage_code(1, False, False, True):
        tail.add(i)

    k = tail
    vC = tmp[0]
    k.v("v_and_b32", l15, 15, tid)
    k.v("v_lshrrev_b32", wv, 6, tid)
    k.v("v_lshrrev_b32", wm, (WN.bit_length() - 1), wv)
    k.v("v_and_b32", wn, WN - 1, wv)
    k.v("v_mul_u32_u24", t, TM, wm)
    k.v("v_add_u32", t, t, l15)
    k.v("v_mul_u32_u24", t2, TN * 2, wn)
    k.v("v_mad_u32_u24", vC, t, sLdc, t2)
    k.v("v_bfe_u32", lq, tid, 4, 2)
    k.v("v_and_b32", t, 1, lq)
    k.v("v_lshlrev_b32", t, 5, t)
    k.v("v_lshrrev_b32", t2, 1, lq)
    k.v("v_lshl_or_b32", t, t2, 4, t)
    k.v("v_add_u32", vC, vC, t)
    sRow = sT[1]
    NSET = 4

    def epi(relu):
        cnt = 0
        for mb in range(NMB):
            if mb == 0:
                k.s("s_mov_b32", sRow, 0)
            else:
                k.s("s_lshl_b32", sT[2], sLdc, 4)
                k.s("s_add_u32", sRow, sRow, sT[2])
            for p in range(NNB // 2):
                base = 4 + (cnt % NSET) * 12
                cnt += 1
                tt = V(base, 8)
                T = V(base + 8, 4)
                for u in range(2):
                    for r in range(4):
                        k.v("v_accvgpr_read_b32", tt[u * 4 + r], acc[2 * p + u][mb][r])
                for q in range(4):
                    k.v("v_cvt_pk_bf16_f32", T[q], tt[2 * q], tt[2 * q + 1])
                k.v("v_permlane16_swap_b32", T[0], T[2])
                k.v("v_permlane16_swap_b32", T[1], T[3])
                if relu:
                    for q in range(4):
                        k.v("v_pk_max_i16", T[q], T[q], 0)
                k.buf_store(T, vC, srdC, sRow, offset=p * 64)

    if relu_possible:
        k.s("s_cmp_eq_u32", sRelu, 0)
        k.branch("s_cbranch_scc1", f"{name}_epi_plain")
        epi(True)
        k.branch("s_branch", f"{name}_end")
        k.label(f"{name}_epi_plain", landing=True)
    epi(False)
    k.label(f"{name}_end")
    k.endpgm()

    segs = [Seg(pro), Seg(body.ins, loop=True), Seg(tail.ins)]
    return dict(name=name, segs=segs, vgpr=max(nvgpr, 8), agpr=nagpr, sgpr=48, lds=2 * STAGE)


def csel(k, dst, idx, a, b):
    if isinstance(b, int) and isinstance(a, int):
        k.s("s_mov_b32", dst, b)
        b = dst
    k.s("s_cmp_lt_u32", idx, 16)
    k.s("s_cselect_b32", dst, a, b)


def gen_gemm1():
    name = "gemm1_kernel"
    NWG = 240

    def decode(k, R):
        sT, sP = R["sT"], R["sP"]
        pws, pwq, pw1 = sP.sub(0, 2), sP.sub(2, 2), sP.sub(4, 2)
        k.s_load(pws, KARG, KA_WS * 8)
        k.s_load(pwq, KARG, KA_WQ * 8)
        k.s_load(pw1, KARG, KA_W1 * 8)
        xcd, idx, m, n, u = sT[0], sT[1], sT[2], sT[3], sT[4]
        k.s("s_and_b32", xcd, WGID, 7)
        k.s("s_lshr_b32", idx, WGID, 3)
        k.s("s_mul_i32", u, xcd, 14)
        k.s("s_add_u32", u, u, idx)
        k.s("s_sub_u32", u, u, 16)
        k.s("s_lshl_b32", n, xcd, 1)
        k.s("s_lshr_b32", sT[5], idx, 3)
        k.s("s_add_u32", n, n, sT[5])
        csel(k, m, idx, idx, u)
        k.s("s_and_b32", m, m, 7)
        k.s("s_lshr_b32", u, u, 3)
        csel(k, n, idx, n, u)
        pW = sP.sub(6, 2)
        csel(k, pW[0], idx, pwq[0], pw1[0])
        csel(k, pW[1], idx, pwq[1], pw1[1])
        csel(k, R["sLdw"], idx, 8192, 7168)
        k.s("s_mov_b32", R["sLdc"], R["sLdw"])
        k.s("s_mov_b32", R["sLda"], 2048)
        csel(k, R["sRelu"], idx, 0, 1)
        cofs, csz, wsz = sP[8], sP[9], sP[10]
        csel(k, cofs, idx, WS_Q, WS_H)
        csel(k, csz, idx, SZ_Q, SZ_H)
        csel(k, wsz, idx, SZ_WQ, SZ_W1)
        k.s("s_mov_b32", R["sLoop"], 1024 // BK // 2 - 1)
        o1, o2 = sP[11], sP[12]
        k.s("s_lshl_b32", o1, m, 19)
        k.s("s_add_u32", o2, o1, WS_XN)
        mk_srd(k, R["srdA"], pws, o2, 0)
        k.s("s_sub_u32", R["srdA"][2], SZ_XN, o1)
        k.s("s_lshl_b32", o1, n, 9)
        mk_srd(k, R["srdW"], pW, o1, 0)
        k.s("s_sub_u32", R["srdW"][2], wsz, o1)
        k.s("s_lshl_b32", o2, m, 8)
        k.s("s_mul_i32", o2, o2, R["sLdc"])
        k.s("s_add_u32", o1, o1, o2)
        k.s("s_add_u32", o2, o1, cofs)
        mk_srd(k, R["srdC"], pws, o2, 0)
        k.s("s_sub_u32", R["srdC"][2], csz, o1)

    kd = gen_gemm(name, 256, 256, 2, 2, decode, NWG, True)
    kd.update(grid=(NWG, 1, 1), block=(256, 1, 1))
    return kd


def gen_gemm2():
    name = "gemm2_kernel"
    NWG = 256

    def decode(k, R):
        sT, sP = R["sT"], R["sP"]
        pws, pwo, pw2 = sP.sub(0, 2), sP.sub(2, 2), sP.sub(4, 2)
        k.s_load(pws, KARG, KA_WS * 8)
        k.s_load(pwo, KARG, KA_WO * 8)
        k.s_load(pw2, KARG, KA_W2 * 8)
        xcd, idx, m, n = sT[0], sT[1], sT[2], sT[3]
        k.s("s_and_b32", xcd, WGID, 7)
        k.s("s_lshr_b32", idx, WGID, 3)
        k.s("s_lshr_b32", m, xcd, 1)
        k.s("s_lshl_b32", m, m, 2)
        k.s("s_and_b32", sT[4], idx, 3)
        k.s("s_add_u32", m, m, sT[4])
        k.s("s_and_b32", n, xcd, 1)
        k.s("s_lshl_b32", n, n, 2)
        k.s("s_bfe_u32", sT[4], idx, (2 << 16) | 2)
        k.s("s_add_u32", n, n, sT[4])
        pW = sP.sub(6, 2)
        csel(k, pW[0], idx, pwo[0], pw2[0])
        csel(k, pW[1], idx, pwo[1], pw2[1])
        k.s("s_mov_b32", R["sLdw"], 2048)
        k.s("s_mov_b32", R["sLdc"], 2048)
        csel(k, R["sLda"], idx, 8192, 7168)
        k.s("s_mov_b32", R["sRelu"], 0)
        aofs, asz, wsz, cofs = sP[8], sP[9], sP[10], sP[13]
        csel(k, aofs, idx, WS_O, WS_H)
        csel(k, asz, idx, SZ_O, SZ_H)
        csel(k, wsz, idx, SZ_WO, SZ_W2)
        csel(k, cofs, idx, WS_S, WS_G)
        csel(k, R["sLoop"], idx, 4096 // BK // 2 - 1, 3584 // BK // 2 - 1)
        o1, o2 = sP[11], sP[12]
        k.s("s_lshl_b32", o1, m, 7)
        k.s("s_mul_i32", o1, o1, R["sLda"])
        k.s("s_add_u32", o2, o1, aofs)
        mk_srd(k, R["srdA"], pws, o2, 0)
        k.s("s_sub_u32", R["srdA"][2], asz, o1)
        k.s("s_lshl_b32", o1, n, 8)
        mk_srd(k, R["srdW"], pW, o1, 0)
        k.s("s_sub_u32", R["srdW"][2], wsz, o1)
        k.s("s_lshl_b32", o2, m, 18)
        k.s("s_add_u32", o1, o1, o2)
        k.s("s_add_u32", o2, o1, cofs)
        mk_srd(k, R["srdC"], pws, o2, 0)
        k.s("s_sub_u32", R["srdC"][2], SZ_S, o1)

    kd = gen_gemm(name, 128, 128, 2, 2, decode, NWG, False)
    kd.update(grid=(NWG, 1, 1), block=(256, 1, 1))
    return kd
```

```python
import sys
import os

sys.path.insert(0, os.path.dirname(os.path.abspath(__file__)))
from common import *
import k_elem

NAME = "recurrent_scan__sliding_block_cached__dense_activation_relu__prompt"
OUT = f"cdna_kernels/{NAME}.s"

HEADER = """; Kernarg layout for this problem (88 bytes, ptrs only, base s[0:1]):
"""


def emit_kernel(kd):
    flat = finalize(kd["segs"])
    name = kd["name"]
    txt = [f".globl {name}", ".p2align 8", f".type {name},@function", f"{name}:", render(flat)]
    return "\n".join(txt)


def emit_desc(kd):
    name = kd["name"]
    arch = kd["vgpr"]
    acc = kd.get("agpr", 0)
    accum_off = (arch + 3) // 4 * 4
    nfv = accum_off + acc if acc else arch
    return f""".amdhsa_kernel {name}
  .amdhsa_next_free_vgpr {nfv}
  .amdhsa_next_free_sgpr {kd['sgpr']}
  .amdhsa_accum_offset {accum_off}
  .amdhsa_group_segment_fixed_size 0
  .amdhsa_kernarg_size 88
  .amdhsa_user_sgpr_count 2
  .amdhsa_user_sgpr_kernarg_segment_ptr 1
  .amdhsa_system_sgpr_workgroup_id_x 1
  .amdhsa_float_denorm_mode_32 3
.end_amdhsa_kernel"""


def build(kernels, path=OUT):
    lines = [HEADER.rstrip("\n")]
    for kd in kernels:
        g, b = kd["grid"], kd["block"]
        lines.append(f"; @launch kernel={kd['name']} grid=({g[0]},{g[1]},{g[2]}) block=({b[0]},{b[1]},{b[2]}) lds={kd['lds']}")
    lines.append('.amdgcn_target "amdgcn-amd-amdhsa--gfx950"')
    lines.append(".text")
    seen = set()
    for kd in kernels:
        if kd["name"] in seen:
            continue
        seen.add(kd["name"])
        lines.append(emit_kernel(kd))
    lines.append('.section .rodata,"a"')
    seen = set()
    for kd in kernels:
        if kd["name"] in seen:
            continue
        seen.add(kd["name"])
        lines.append(".p2align 6")
        lines.append(emit_desc(kd))
    txt = "\n".join(lines) + "\n"
    open(path, "w").write(txt)
    return txt


def main():
    which = sys.argv[1] if len(sys.argv) > 1 else "all"
    ks = [k_elem.gen_ln()]
    if which in ("all", "gemm1"):
        import k_gemm
        ks.append(k_gemm.gen_gemm1())
    if which == "all":
        import k_attn
        ks.append(k_attn.gen_attn())
        ks.append(k_gemm.gen_gemm2())
        if os.environ.get("DUP") == "gemm2":
            ks.append(ks[-1])
        ks.append(k_elem.gen_combine(NAME + "_kernel"))
    txt = build(ks)
    print("wrote", len(txt), "bytes")


if __name__ == "__main__":
    main()
```

```python
from asmlib import *

MiB = 1 << 20
import os as _os
PADB = int(_os.environ.get("PADB", "256"))
LD_Q = 8192 + PADB
LD_H = 7168 + PADB
LD_O = 8192 + PADB
WS_XN = 0 * MiB
WS_Q = 4 * MiB
WS_H = 22 * MiB
WS_O = 38 * MiB
WS_S = 56 * MiB
WS_G = 60 * MiB
WS_FLAGS = 64 * MiB
SZ_XN = 2048 * 1024 * 2
SZ_Q = 2048 * LD_Q
SZ_H = 2048 * LD_H
SZ_O = 2048 * LD_O
SZ_S = 2048 * 1024 * 2
SZ_G = 2048 * 1024 * 2

KA_X, KA_K, KA_V, KA_WQ, KA_WO, KA_BX, KA_W1, KA_W2, KA_OUT, KA_DBG, KA_WS = range(11)
SZ_X = 2048 * 1024 * 2
SZ_KV = 4 * 2048 * 128 * 2
SZ_WQ = 1024 * 4096 * 2
SZ_WO = 4096 * 1024 * 2
SZ_W1 = 1024 * 3584 * 2
SZ_W2 = 3584 * 1024 * 2
SZ_OUT = 2048 * 1024 * 2

KARG = S(0, 2)
WGID = S(2)


def mk_srd(k, srd, base, off, size):
    if isinstance(off, int) and off == 0:
        k.s("s_mov_b32", srd[0], base[0])
        k.s("s_and_b32", srd[1], base[1], 0xFFFF)
    else:
        k.s("s_add_u32", srd[0], base[0], off)
        k.s("s_addc_u32", srd[1], base[1], 0)
        k.s("s_and_b32", srd[1], srd[1], 0xFFFF)
    k.s("s_mov_b32", srd[2], size)
    k.s("s_mov_b32", srd[3], 0x00020000)


def wave_sum(k, x, tmp, s0, s1):
    for off in (0x041F, 0x081F, 0x101F, 0x201F, 0x401F):
        k.add(Instr(f"ds_swizzle_b32 {tmp}, {x} offset:{off:#x}", "ds", [tmp], [x]))
        k.v("v_add_f32", x, x, tmp)
    k.v("v_readlane_b32", s0, x, 0)
    k.v("v_readlane_b32", s1, x, 32)
    k.v("v_mov_b32", x, s0)
    k.v("v_add_f32", x, s1, x)


def bf16_round_scalar(k, x, tmp):
    k.v("v_cvt_pk_bf16_f32", tmp, x, x)
    k.v("v_lshlrev_b32", x, 16, tmp)


def f32bits(x):
    import struct
    return "0x%08x" % struct.unpack("<I", struct.pack("<f", x))[0]
```

```python
from common import *
from k_elem import Neg
import k_gemm
from k_gemm import stamp, stamp_store, DIAG

MF = "v_mfma_f32_32x32x16_bf16"
NBLK = 16
KBUF, VBUF = 0, 32768
LDS_BYTES = 32768 + 3 * 16384

tid = V(0)
Qf = [V(4 + 4 * s, 4) for s in range(8)]
Oacc = [V(36 + 16 * db, 16) for db in range(4)]
Sset = [V(100, 16), V(116, 16)]
Pset = [V(132, 8), V(140, 8)]
Kf = [V(148 + 4 * s, 4) for s in range(8)]
Vf = [[V(180 + (db * 2 + ksx) * 4, 4) for ksx in range(2)] for db in range(4)]
X = [V(212 + i) for i in range(8)]
vM, l0, l1, lb0, lb1, mx, tA, tB = (V(220 + i) for i in range(8))
adK = [V(228 + s) for s in range(8)]
adV = [V(236 + db) for db in range(4)]
voK = [V(240), V(241)]
voV = [V(242), V(243)]
vQO = V(244)
T_ = [V(245 + i) for i in range(7)]
NVGPR = 252

srdQ, srdK, srdV, srdO = S(4, 4), S(8, 4), S(12, 4), S(16, 4)
sC, sWv, sOff = S(20), S(21), S(22)
sT = [S(24 + i) for i in range(8)]
sP = S(32, 8)
SCALE_LOG2E = 0.08838834764831845 * 1.4426950408889634


def sm_common(j):
    k = K()
    Sj, Pj = Sset[j & 1], Pset[j & 1]

    def tail(g):
        b = (g & 1) * 4
        if g == 0:
            k.v("v_add_f32", lb0, X[b], X[b + 1])
            k.v("v_add_f32", lb1, X[b + 2], X[b + 3])
        else:
            k.v("v_add_f32", lb0, lb0, X[b])
            k.v("v_add_f32", lb1, lb1, X[b + 1])
            k.v("v_add_f32", lb0, lb0, X[b + 2])
            k.v("v_add_f32", lb1, lb1, X[b + 3])
        k.v("v_cvt_pk_bf16_f32", Pj[2 * g], X[b], X[b + 1])
        k.v("v_cvt_pk_bf16_f32", Pj[2 * g + 1], X[b + 2], X[b + 3])

    for g in range(4):
        b = (g & 1) * 4
        for e in range(4):
            k.v("v_fma_f32", X[b + e], Sj[4 * g + e], sC, Neg(vM))
        if g == 0:
            k.v("v_max3_f32", mx, Sj[0], Sj[1], Sj[2])
        else:
            k.v("v_max3_f32", mx, mx, Sj[4 * g - 1], Sj[4 * g])
        for e in range(4):
            k.v("v_exp_f32", X[b + e], X[b + e])
        k.v("v_max3_f32", mx, mx, Sj[4 * g + 1], Sj[4 * g + 2])
        if g > 0:
            tail(g - 1)
    k.v("v_max_f32", mx, mx, Sj[15])
    tail(3)
    k.v("v_fma_f32", mx, mx, sC, Neg(vM))
    k.vcmp("v_cmp_lt_f32", VCC, 8.0, mx)
    return k.ins


def exact_max(k, j):
    Sj = Sset[j & 1]
    k.v("v_max3_f32", mx, Sj[0], Sj[1], Sj[2])
    for i in range(3, 15, 2):
        k.v("v_max3_f32", mx, mx, Sj[i], Sj[i + 1])
    k.v("v_max_f32", mx, mx, Sj[15])
    k.v("v_mov_b32", tA, mx)
    k.v("v_permlane32_swap_b32", mx, tA)
    k.v("v_max_f32", mx, mx, tA)


def sm_first():
    k = K()
    exact_max(k, 0)
    k.v("v_mul_f32", vM, sC, mx)
    ins = k.ins + sm_common(0)
    return [i for i in ins if not i.text.startswith("v_cmp_lt_f32")]


def fixup(j):
    k = K()
    Sj, Pj = Sset[j & 1], Pset[j & 1]
    k.label(f"attn_fix_{j}", landing=True)
    exact_max(k, j)
    k.v("v_mul_f32", tA, sC, mx)
    k.v("v_max_f32", tA, vM, tA)
    k.v("v_sub_f32", tB, vM, tA)
    k.v("v_exp_f32", tB, tB)
    k.v("v_mov_b32", vM, tA)
    for db in range(4):
        for i in range(16):
            k.v("v_mul_f32", Oacc[db][i], Oacc[db][i], tB)
    k.v("v_mul_f32", l0, l0, tB)
    k.v("v_mul_f32", l1, l1, tB)
    for g in range(4):
        for e in range(4):
            k.v("v_fma_f32", X[e], Sj[4 * g + e], sC, Neg(vM))
        for e in range(4):
            k.v("v_exp_f32", X[e], X[e])
        if g == 0:
            k.v("v_add_f32", lb0, X[0], X[1])
            k.v("v_add_f32", lb1, X[2], X[3])
        else:
            k.v("v_add_f32", lb0, lb0, X[0])
            k.v("v_add_f32", lb1, lb1, X[1])
            k.v("v_add_f32", lb0, lb0, X[2])
            k.v("v_add_f32", lb1, lb1, X[3])
        k.v("v_cvt_pk_bf16_f32", Pj[2 * g], X[0], X[1])
        k.v("v_cvt_pk_bf16_f32", Pj[2 * g + 1], X[2], X[3])
    k.nop(3)
    k.branch("s_branch", f"attn_ret_{j}")
    return k.ins


def k_reads(b):
    k = K()
    off = ((b >> 1) & 1) * 16384 + (b & 1) * 8192
    for s in range(8):
        k.ds_read("ds_read_b128", Kf[s], adK[s], off)
    return k.ins


def v_reads(b):
    k = K()
    st = b >> 1
    base = (st % 3) * 16384 + (b & 1) * 8192
    for db in range(4):
        for ksx in range(2):
            for tt in range(2):
                k.ds_read("ds_read_b64_tr_b16", Vf[db][ksx].sub(2 * tt, 2), adV[db],
                          base + (16 * ksx + 8 * tt) * 256)
    return k.ins


def dma_stage(which, t):
    k = K()
    if which == "K":
        lbase, vo, srd = KBUF + (t & 1) * 16384, voK, srdK
    else:
        lbase, vo, srd = VBUF + (t % 3) * 16384, voV, srdV
    k.s("s_mov_b32", sOff, t * 16384)
    for j in range(2):
        k.s("s_add_u32", M0, sWv, lbase + j * 1024)
        k.buf_load_lds(vo[j], srd, sOff)
    return k.ins


def qk(b):
    k = K()
    S_ = Sset[b & 1]
    for s in range(8):
        k.mfma(MF, S_, Kf[s], Qf[s], 0 if s == 0 else None)
    return k.ins


def pv(b):
    k = K()
    P_ = Pset[b & 1]
    for ksx in range(2):
        for db in range(4):
            k.mfma(MF, Oacc[db], Vf[db][ksx], P_.sub(4 * ksx, 4))
    return k.ins


def interleave(k, mfmas, fill_lists):
    n = len(mfmas)
    if n == 0:
        for ins, lo, hi in fill_lists:
            for i in ins:
                k.add(i)
        return
    slots = [[] for _ in range(n)]
    for ins, lo, hi in fill_lists:
        m = len(ins)
        for idx, i in enumerate(ins):
            slots[lo + (idx * (hi - lo)) // m].append(i)
    for m, sl in zip(mfmas, slots):
        k.add(m)
        for i in sl:
            k.add(i)


def gen_attn():
    name = "attn_kernel"
    NWG = 256
    k = K()
    k.s("s_cmp_ge_u32", WGID, NWG)
    k.branch("s_cbranch_scc1", f"{name}_end")
    stamp(k, 0)
    pws, pk, pvv = sP.sub(0, 2), sP.sub(2, 2), sP.sub(4, 2)
    k.s_load(pws, KARG, KA_WS * 8)
    k.s_load(pk, KARG, KA_K * 8)
    k.s_load(pvv, KARG, KA_V * 8)
    xcd, idx, g, idd, head, qblk = sT[0], sT[1], sT[2], sT[3], sT[4], sT[5]
    k.s("s_and_b32", xcd, WGID, 7)
    k.s("s_lshr_b32", idx, WGID, 3)
    k.s("s_lshr_b32", g, xcd, 1)
    k.s("s_and_b32", idd, xcd, 1)
    k.s("s_lshl_b32", idd, idd, 5)
    k.s("s_add_u32", idd, idd, idx)
    k.s("s_lshr_b32", head, idd, 3)
    k.s("s_lshl_b32", sT[6], g, 3)
    k.s("s_add_u32", head, head, sT[6])
    k.s("s_and_b32", qblk, idd, 7)
    toff = sT[6]
    k.s("s_mul_i32", toff, qblk, 256 * LD_Q)
    k.s("s_lshl_b32", sT[7], head, 8)
    k.s("s_add_u32", toff, toff, sT[7])
    k.s("s_add_u32", sT[7], toff, WS_Q)
    mk_srd(k, srdQ, pws, sT[7], 0)
    k.s("s_sub_u32", srdQ[2], SZ_Q, toff)
    k.s("s_add_u32", sT[7], toff, WS_O)
    mk_srd(k, srdO, pws, sT[7], 0)
    k.s("s_sub_u32", srdO[2], SZ_O, toff)
    k.s("s_lshl_b32", sT[7], g, 19)
    k.s("s_add_u32", sT[7], sT[7], 1536 * 256)
    mk_srd(k, srdK, pk, sT[7], 512 * 256)
    mk_srd(k, srdV, pvv, sT[7], 512 * 256)
    k.s("s_mov_b32", sC, f32bits(SCALE_LOG2E))
    lane, wv = T_[0], T_[1]
    k.v("v_and_b32", lane, 63, tid)
    k.v("v_lshrrev_b32", wv, 6, tid)
    k.v("v_readfirstlane_b32", sT[0], wv)
    k.s("s_lshl_b32", sWv, sT[0], 11)
    t0, t1, t2 = T_[2], T_[3], T_[4]
    for j in range(2):
        k.v("v_lshrrev_b32", t0, 4, lane)
        k.v("v_lshl_add_u32", t0, wv, 3, t0)
        k.v("v_add_u32", t0, 4 * j, t0)
        k.v("v_and_b32", t1, 15, lane)
        k.v("v_and_b32", t2, 15, t0)
        k.v("v_xor_b32", t2, t2, t1)
        k.v("v_lshlrev_b32", t2, 4, t2)
        k.v("v_lshl_add_u32", voK[j], t0, 8, t2)
        k.v("v_and_b32", t2, 3, t0)
        k.v("v_lshlrev_b32", t2, 2, t2)
        k.v("v_xor_b32", t2, t2, t1)
        k.v("v_lshlrev_b32", t2, 4, t2)
        k.v("v_lshl_add_u32", voV[j], t0, 8, t2)
    for which, t in (("K", 0), ("V", 0), ("K", 1), ("V", 1), ("V", 2)):
        for i in dma_stage(which, t):
            k.add(i)
    k.v("v_and_b32", t0, 31, lane)
    k.v("v_lshl_add_u32", t0, wv, 5, t0)
    k.v("v_lshrrev_b32", t1, 5, lane)
    k.v("v_lshlrev_b32", t1, 4, t1)
    k.s("s_mov_b32", sT[7], LD_Q)
    k.v("v_mad_u32_u24", vQO, t0, sT[7], t1)
    for s in range(8):
        k.buf_load(Qf[s], vQO, srdQ, 0, offset=32 * s)
    hh, r31, l15 = T_[2], T_[3], T_[4]
    k.v("v_lshrrev_b32", hh, 5, lane)
    k.v("v_and_b32", r31, 31, lane)
    k.v("v_and_b32", l15, 15, lane)
    for s in range(8):
        k.v("v_add_u32", T_[5], 2 * s, hh)
        k.v("v_xor_b32", T_[5], T_[5], l15)
        k.v("v_lshlrev_b32", T_[5], 4, T_[5])
        k.v("v_lshl_add_u32", adK[s], r31, 8, T_[5])
    rr, cc, dsub = T_[2], T_[3], T_[4]
    k.v("v_bfe_u32", rr, lane, 2, 2)
    k.v("v_and_b32", cc, 3, lane)
    k.v("v_bfe_u32", dsub, lane, 4, 1)
    k.v("v_lshrrev_b32", T_[5], 5, lane)
    k.v("v_lshl_add_u32", T_[5], T_[5], 2, rr)
    k.v("v_lshlrev_b32", T_[5], 8, T_[5])
    k.v("v_and_b32", T_[6], 1, cc)
    k.v("v_lshl_add_u32", T_[5], T_[6], 3, T_[5])
    k.v("v_lshrrev_b32", T_[6], 1, cc)
    k.v("v_lshl_add_u32", T_[6], dsub, 1, T_[6])
    k.v("v_lshl_add_u32", T_[5], T_[6], 4, T_[5])
    k.v("v_add_u32", T_[5], VBUF, T_[5])
    for db in range(4):
        k.v("v_xor_b32", T_[6], db, rr)
        k.v("v_lshl_add_u32", adV[db], T_[6], 6, T_[5])
    for db in range(4):
        for i in range(16):
            k.v("v_mov_b32", Oacc[db][i], 0)
    k.v("v_mov_b32", l0, 0)
    k.v("v_mov_b32", l1, 0)
    k.waitcnt(vm=16)
    k.barrier()
    stamp(k, 1)
    for i in k_reads(0):
        k.add(i)

    for it in range(NBLK + 2):
        k.comment(f"---- iteration {it}")
        mf_qk = qk(it) if it < NBLK else []
        mf_pv = pv(it - 2) if 0 <= it - 2 < NBLK else []
        j = it - 1
        if j == 0:
            val = sm_first()
        elif 0 < j < NBLK:
            val = sm_common(j)
        else:
            val = []
        vr = v_reads(it - 2) if 0 <= it - 2 < NBLK else []
        kr = k_reads(it + 1) if it + 1 < NBLK else []
        dm = []
        if it & 1:
            t = (it - 1) // 2
            if t + 2 < 8:
                dm += dma_stage("K", t + 2)
            if t >= 2 and t + 1 < 8:
                dm += dma_stage("V", t + 1)
        mfmas = mf_qk + mf_pv
        nq, n = len(mf_qk), len(mf_qk) + len(mf_pv)
        fills = []
        if n:
            fills.append((val, 0, n))
            fills.append((vr, 0, max(nq, 1)))
            fills.append((kr, nq if nq < n else max(n - 1, 0), n))
            fills.append((dm, min(nq, n - 1), n))
            if nq == 0 and vr:
                for i in vr:
                    k.add(i)
                fills[1] = ([], 0, 1)
        interleave(k, mfmas, [f for f in fills if f[0]])
        if 1 <= j < NBLK:
            k.branch("s_cbranch_vccnz", f"attn_fix_{j}")
            k.label(f"attn_ret_{j}")
        if 0 <= j < NBLK:
            k.v("v_add_f32", l0, l0, lb0)
            k.v("v_add_f32", l1, l1, lb1)
        if (it & 1) == 0 and it <= 14:
            k.waitcnt(vm=0, lg=0)
            k.barrier()

    stamp(k, 2)
    k.v("v_add_f32", l0, l0, l1)
    k.v("v_mov_b32", tA, l0)
    k.v("v_permlane32_swap_b32", l0, tA)
    k.v("v_add_f32", l0, l0, tA)
    k.v("v_rcp_f32", tB, l0)
    cnt = 0
    for db in range(4):
        for pp in range(2):
            base = 100 + (cnt % 4) * 12
            cnt += 1
            tt, T = V(base, 8), V(base + 8, 4)
            for i in range(8):
                k.v("v_mul_f32", tt[i], Oacc[db][8 * pp + i], tB)
            for q in range(4):
                k.v("v_cvt_pk_bf16_f32", T[q], tt[2 * q], tt[2 * q + 1])
            k.v("v_permlane32_swap_b32", T[0], T[2])
            k.v("v_permlane32_swap_b32", T[1], T[3])
            k.buf_store(T, vQO, srdO, 0, offset=64 * db + 32 * pp)
    if "stamps" in DIAG:
        k.waitcnt(vm=0)
        stamp(k, 3)
        stamp_store(k, "attn", S(76, 4), pws)
    k.branch("s_branch", f"{name}_end")
    for j in range(1, NBLK):
        for i in fixup(j):
            k.add(i)
    k.label(f"{name}_end")
    k.endpgm()
    return dict(name=name, segs=[Seg(k.ins)], vgpr=NVGPR, sgpr=(96 if "stamps" in DIAG else 48), grid=(NWG, 1, 1), block=(512, 1, 1),
                lds=LDS_BYTES)
```

```python
from common import *

MF = "v_mfma_f32_16x16x32_bf16"
BK = 64


class G:
    pass


import os
DIAG = os.environ.get("GEMM_DIAG", "")


def stamp(k, i, fine=False):
    if "stamps2" in DIAG and not fine and i > 0:
        return
    if fine and "stamps2" not in DIAG:
        return
    if "stamps" in DIAG:
        k.raw(f"s_memtime s[{64 + 2 * i}:{65 + 2 * i}]", "smem", wr=[S(64 + 2 * i, 2)])
        if i == 0:
            k.raw("s_memrealtime s[80:81]", "smem", wr=[S(80, 2)])
        k.waitcnt(lg=0)


def stamp_store(k, name, srd_tmp, pws):
    if "stamps" not in DIAG:
        return
    k.raw("s_memrealtime s[72:73]", "smem", wr=[S(72, 2)])
    k.waitcnt(lg=0)
    mk_srd(k, srd_tmp, pws, (200 if name.startswith("gemm1") else (202 if name.startswith("attn") else 201)) * MiB, 1 << 20)
    k.v("v_lshlrev_b32", V(1), 6, 0) if False else None
    k.s("s_lshl_b32", S(74), WGID, 6)
    k.v("v_mov_b32", V(1), S(74))
    for i in range(10):
        k.v("v_mov_b32", V(2), S(64 + i))
        k.buf_store(V(2), V(1), srd_tmp, 0, offset=4 * i)
    for i in range(2):
        k.v("v_mov_b32", V(2), S(80 + i))
        k.buf_store(V(2), V(1), srd_tmp, 0, offset=40 + 4 * i)


def gen_gemm(name, BM, BN, WM, WN, decode, nwg, relu_possible, NST=2, regA=False):
    g = G()
    NW = WM * WN
    assert NW == 4
    TM, TN = BM // WM, BN // WN
    NMB, NNB = TM // 16, TN // 16
    PA, PW = BK * 2, BN * 2
    A_BYTES, W_BYTES = BM * PA, BK * PW
    STAGE = A_BYTES + W_BYTES
    cntA, cntW = A_BYTES // 1024 // NW, W_BYTES // 1024 // NW
    srdA, srdW, srdC = S(4, 4), S(8, 4), S(12, 4)
    sA, sW, stepW, sLoop = S(16), S(17), S(18), S(19)
    sLda, sLdw, sLdc, sRelu = S(20), S(21), S(22), S(23)
    sWvA, sWvW = S(24), S(25)
    sA2 = S(48)
    sT = [S(26 + i) for i in range(6)]
    sP = S(32, 16)
    tid = V(0)
    FS = (NNB + NMB) * 4
    Wf = [[V(4 + X * FS + nb * 4, 4) for nb in range(NNB)] for X in range(2)]
    Af = [[V(4 + X * FS + NNB * 4 + mb * 4, 4) for mb in range(NMB)] for X in range(2)]
    vb = 4 + 2 * FS
    voA = [V(vb + j) for j in range(cntA)]
    vb += cntA
    voW = [V(vb + j) for j in range(cntW)]
    vb += cntW
    adA = [[V(vb + st * 2 + ks) for ks in range(2)] for st in range(NST)]
    vb += 2 * NST
    adW = [[V(vb + st * NNB + nb) for nb in range(NNB)] for st in range(NST)]
    vb += NST * NNB
    tmp = [V(vb + i) for i in range(12)]
    vb += 12
    if regA:
        vb = (vb + 3) // 4 * 4
        stg = [V(vb + 4 * j, 4) for j in range(cntA)]
        vb += 4 * cntA
        adWr = [V(vb + st) for st in range(NST)]
        vb += NST
    nvgpr = vb
    acc = [[A((nb * NMB + mb) * 4, 4) for mb in range(NMB)] for nb in range(NNB)]
    nagpr = NNB * NMB * 4

    k = K()
    k.s("s_cmp_ge_u32", WGID, nwg)
    k.branch("s_cbranch_scc1", f"{name}_end")
    stamp(k, 0)
    decode(k, dict(srdA=srdA, srdW=srdW, srdC=srdC, sLda=sLda, sLdw=sLdw, sLdc=sLdc, sRelu=sRelu,
                   sLoop=sLoop, sT=sT, sP=sP, BM=BM, BN=BN, NST=NST))
    stamp(k, 1, fine=True)
    lane, wv = tmp[0], tmp[1]
    k.v("v_and_b32", lane, 63, tid)
    k.v("v_lshrrev_b32", wv, 6, tid)
    k.v("v_readfirstlane_b32", sT[0], wv)
    k.s("s_mul_i32", sWvA, sT[0], cntA * 1024)
    k.s("s_mul_i32", sWvW, sT[0], cntW * 1024)
    k.s("s_mov_b32", sA, 0)
    k.s("s_mov_b32", sW, 0)
    k.s("s_lshl_b32", stepW, sLdw, 6)

    def dma_voffs(dst, P, cnt, is_w):
        RPI = 1024 // P
        cpr = P // 16
        lg = cpr.bit_length() - 1
        pc, rowb, row, t, t2 = tmp[2], tmp[3], tmp[4], tmp[5], tmp[6]
        outs = []
        for j in range(cnt):
            kb = K()
            if j == 0:
                kb.v("v_and_b32", pc, cpr - 1, lane)
                kb.v("v_lshrrev_b32", rowb, lg, lane)
                kb.v("v_mad_u32_u24", rowb, wv, cnt * RPI, rowb)
            kb.v("v_add_u32", row, j * RPI, rowb)
            if not is_w:
                kb.v("v_bfe_u32", t, row, 1, 3)
                kb.v("v_xor_b32", t, t, pc)
                kb.v("v_lshlrev_b32", t, 4, t)
                kb.v("v_mad_u32_u24", dst[j], row, sLda, t)
            else:
                kb.v("v_and_b32", t, 3, row)
                kb.v("v_bfe_u32", t2, row, 3, 1)
                kb.v("v_lshl_or_b32", t, t2, 2, t)
                kb.v("v_lshrrev_b32", t2, 1, pc)
                kb.v("v_xor_b32", t, t, t2)
                kb.v("v_lshlrev_b32", t, 5, t)
                kb.v("v_and_b32", t2, 1, pc)
                kb.v("v_lshl_or_b32", t, t2, 4, t)
                kb.v("v_mad_u32_u24", dst[j], row, sLdw, t)
            outs.append(kb.ins)
        return outs

    voff_calc = dma_voffs(voA, PA, cntA, False) + dma_voffs(voW, PW, cntW, True)

    def dma_group(kk, stage_par, withA=True):
        out = []
        if not withA:
            for j in range(cntA):
                kb = K()
                kb.ds_write("ds_write_b128", adWr[stage_par], stg[j], j * 1024)
                kb.buf_load(stg[j], voA[j], srdA, sA2)
                out.append(kb.ins)
        for j in range(cntA if withA else 0):
            kb = K()
            kb.s("s_add_u32", M0, sWvA, stage_par * STAGE + j * 1024)
            kb.buf_load_lds(voA[j], srdA, sA)
            out.append(kb.ins)
        for j in range(cntW):
            kb = K()
            kb.s("s_add_u32", M0, sWvW, stage_par * STAGE + A_BYTES + j * 1024)
            kb.buf_load_lds(voW[j], srdW, sW)
            out.append(kb.ins)
        return out

    def adv_k():
        kb = K()
        kb.s("s_add_u32", sA, sA, BK * 2)
        if regA:
            kb.s("s_add_u32", sA2, sA2, BK * 2)
        kb.s("s_add_u32", sW, sW, stepW)
        return kb.ins

    PRO_ST = min(NST, 2)
    for pr, calc in zip(dma_group(k, 0), voff_calc):
        k.add(pr[0])
        for i in calc:
            k.add(i)
        k.add(pr[1])
    for i in adv_k():
        k.add(i)
    main_k = k
    k = K()
    stamp(k, 2, fine=True)
    if regA:
        k.s("s_mov_b32", sA2, NST * BK * 2)
        for j in range(cntA):
            k.buf_load(stg[j], voA[j], srdA, sA2)
        k.s("s_add_u32", sA2, sA2, BK * 2)
        k.v("v_lshlrev_b32", tmp[2], 4, lane)
        k.v("v_lshl_add_u32", adWr[0], wv, (cntA * 1024).bit_length() - 1, tmp[2])
        for st in range(1, NST):
            k.v("v_add_u32", adWr[st], st * STAGE, adWr[0])
    wm, wn = tmp[2], tmp[3]
    k.v("v_lshrrev_b32", wm, (WN.bit_length() - 1), wv)
    k.v("v_and_b32", wn, WN - 1, wv)
    l15, lq, t, t2 = tmp[4], tmp[5], tmp[6], tmp[7]
    k.v("v_and_b32", l15, 15, lane)
    k.v("v_lshrrev_b32", lq, 4, lane)
    k.v("v_mul_u32_u24", t, TM, wm)
    k.v("v_add_u32", t, t, l15)
    k.v("v_lshlrev_b32", t, 7, t)
    k.v("v_lshrrev_b32", t2, 1, l15)
    k.v("v_xor_b32", t2, t2, lq)
    k.v("v_lshl_add_u32", adA[0][0], t2, 4, t)
    k.v("v_xor_b32", adA[0][1], 64, adA[0][0])
    for st in range(1, NST):
        for ks in range(2):
            k.v("v_add_u32", adA[st][ks], st * STAGE, adA[0][ks])
    gq, rr, cc, f = tmp[8], tmp[9], tmp[10], tmp[11]
    k.v("v_lshrrev_b32", gq, 4, lane)
    k.v("v_bfe_u32", rr, lane, 2, 2)
    k.v("v_and_b32", cc, 3, lane)
    k.v("v_and_b32", f, 1, gq)
    k.v("v_lshl_or_b32", f, f, 2, rr)
    k.v("v_lshl_add_u32", t, gq, 3, rr)
    k.v("v_mul_u32_u24", t, PW, t)
    k.v("v_lshl_add_u32", t, cc, 3, t)
    k.v("v_add_u32", t, A_BYTES, t)
    for nb in range(NNB):
        k.v("v_mul_u32_u24", t2, NNB, wn)
        k.v("v_add_u32", t2, nb, t2)
        k.v("v_xor_b32", t2, t2, f)
        k.v("v_lshl_add_u32", adW[0][nb], t2, 5, t)
        for st in range(1, NST):
            k.v("v_add_u32", adW[st][nb], st * STAGE, adW[0][nb])
    for nb in range(NNB):
        for mb in range(NMB):
            for r in range(4):
                k.v("v_accvgpr_write_b32", acc[nb][mb][r], 0)

    setup = k.ins
    k = main_k
    if PRO_ST > 1:
        grp = dma_group(k, 1)
        per = (len(setup) + len(grp) - 1) // len(grp)
        for gi, pr in enumerate(grp):
            k.add(pr[0])
            for i in setup[gi * per:(gi + 1) * per]:
                k.add(i)
            k.add(pr[1])
        for i in adv_k():
            k.add(i)
    else:
        for i in setup:
            k.add(i)

    def reads(X, st, ks):
        out = []
        seq = []
        for i in range(max(NMB, NNB)):
            if i < NNB:
                seq.append(("W", i))
            if i < NMB:
                seq.append(("A", i))
        for typ, i in seq:
            if typ == "A":
                kb = K()
                kb.ds_read("ds_read_b128", Af[X][i], adA[st][ks], i * 16 * PA)
                out += kb.ins
            else:
                for tt in range(2):
                    kb = K()
                    kb.ds_read("ds_read_b64_tr_b16", Wf[X][i].sub(2 * tt, 2), adW[st][i],
                               ks * 32 * PW + tt * 4 * PW)
                    out += kb.ins
        return out

    CPS = cntA + cntW
    k.waitcnt(vm=(PRO_ST - 1) * CPS)
    k.barrier()
    stamp(k, 1)
    stamp(k, 3, fine=True)
    for i in reads(0, 0, 0):
        k.add(i)
    pro = k.ins

    def substep(X, rd, dmas, extra):
        kb = K()
        mf = []
        for nb in range(NNB):
            for mb in range(NMB):
                mf.append((nb, mb))
        n = len(mf)
        slots = [[] for _ in range(n)]
        span = max(1, (n * 3) // 4)
        for i, r in enumerate(rd):
            slots[(i * span) // max(1, len(rd))].append(r)
        seq = [i for pr in dmas for i in pr]
        for i, ins_ in enumerate(seq):
            slots[1 + (i * (n - 1)) // max(1, len(seq))].append(ins_)
        for e in extra:
            slots[n - 1].append(e)
        for i, (nb, mb) in enumerate(mf):
            if "nomfma" not in DIAG:
                kb.mfma(MF, acc[nb][mb], Wf[X][nb], Af[X][mb])
            for s_ in slots[i]:
                if "nomfma" in DIAG and s_.kind == "ds":
                    continue
                kb.add(s_)
        return kb.ins

    def stage_code(par, do_dma, do_next_read, last, vmn=None, ramp=False):
        out = []
        rdm, rex = [], []
        if ramp:
            for st in range(PRO_ST, NST):
                rdm += dma_group(None, st)
                rdm.append((adv_k()[0], adv_k()[1]))
        out += substep(0, reads(1, par, 1), rdm, [])
        if not last:
            kb = K()
            kb.waitcnt(vm=((NST - 2) * CPS if vmn is None else vmn), lg=0)
            kb.barrier()
            out += kb.ins
        rd = reads(0, (par + 1) % NST, 0) if do_next_read else []
        dm = dma_group(None, par, withA=not regA) if (do_dma and "nodma" not in DIAG) else []
        ex = adv_k() if do_dma else []
        out += substep(1, rd, dm, ex)
        return out

    first = K()
    if NST > PRO_ST:
        for par in range(NST):
            for i in stage_code(par, True, True, False, ramp=(par == 0)):
                first.add(i)
    body = K()
    body.label(f"{name}_loop")
    for par in range(NST):
        for i in stage_code(par, True, True, False):
            body.add(i)
    body.s("s_sub_u32", sLoop, sLoop, 1)
    body.s("s_cmp_lg_u32", sLoop, 0)
    body.branch("s_cbranch_scc1", f"{name}_loop")

    tail = K()
    for par in range(NST):
        for i in stage_code(par, False, par < NST - 1, par == NST - 1, vmn=max(0, NST - 2 - par) * CPS):
            tail.add(i)

    k = tail
    stamp(k, 2)
    vC = tmp[0]
    k.v("v_and_b32", l15, 15, tid)
    k.v("v_lshrrev_b32", wv, 6, tid)
    k.v("v_lshrrev_b32", wm, (WN.bit_length() - 1), wv)
    k.v("v_and_b32", wn, WN - 1, wv)
    k.v("v_mul_u32_u24", t, TM, wm)
    k.v("v_add_u32", t, t, l15)
    k.v("v_mul_u32_u24", t2, TN * 2, wn)
    k.v("v_mad_u32_u24", vC, t, sLdc, t2)
    k.v("v_bfe_u32", lq, tid, 4, 2)
    k.v("v_and_b32", t, 1, lq)
    k.v("v_lshlrev_b32", t, 5, t)
    k.v("v_lshrrev_b32", t2, 1, lq)
    k.v("v_lshl_or_b32", t, t2, 4, t)
    k.v("v_add_u32", vC, vC, t)
    sRow = sT[1]
    NSET = 4

    def epi(relu):
        cnt = 0
        for mb in range(NMB):
            if mb == 0:
                k.s("s_mov_b32", sRow, 0)
            else:
                k.s("s_lshl_b32", sT[2], sLdc, 4)
                k.s("s_add_u32", sRow, sRow, sT[2])
            for p in range(NNB // 2):
                base = 4 + (cnt % NSET) * 12
                cnt += 1
                tt = V(base, 8)
                T = V(base + 8, 4)
                for u in range(2):
                    for r in range(4):
                        k.v("v_accvgpr_read_b32", tt[u * 4 + r], acc[2 * p + u][mb][r])
                for q in range(4):
                    k.v("v_cvt_pk_bf16_f32", T[q], tt[2 * q], tt[2 * q + 1])
                k.v("v_permlane16_swap_b32", T[0], T[2])
                k.v("v_permlane16_swap_b32", T[1], T[3])
                if relu:
                    for q in range(4):
                        k.v("v_pk_max_i16", T[q], T[q], 0)
                k.buf_store(T, vC, srdC, sRow, offset=p * 64)

    if relu_possible:
        k.s("s_cmp_eq_u32", sRelu, 0)
        k.branch("s_cbranch_scc1", f"{name}_epi_plain")
        epi(True)
        k.waitcnt(vm=0)
        stamp(k, 3)
        stamp_store(k, name, S(76, 4), sP.sub(0, 2))
        k.branch("s_branch", f"{name}_end")
        k.label(f"{name}_epi_plain", landing=True)
    epi(False)
    k.waitcnt(vm=0)
    stamp(k, 3)
    stamp_store(k, name, S(76, 4), sP.sub(0, 2))
    k.label(f"{name}_end")
    k.endpgm()

    segs = [Seg(pro + first.ins), Seg(body.ins, loop=True), Seg(tail.ins)]
    return dict(name=name, segs=segs, vgpr=max(nvgpr, 8), agpr=nagpr, sgpr=(96 if "stamps" in DIAG else 50), lds=NST * STAGE)


def csel(k, dst, idx, a, b):
    if isinstance(b, int) and isinstance(a, int):
        k.s("s_mov_b32", dst, b)
        b = dst
    k.s("s_cmp_lt_u32", idx, 16)
    k.s("s_cselect_b32", dst, a, b)


def gen_gemm1():
    name = "gemm1_kernel"
    NWG = 240

    def decode(k, R):
        sT, sP = R["sT"], R["sP"]
        pws, pwq, pw1 = sP.sub(0, 2), sP.sub(2, 2), sP.sub(4, 2)
        k.s_load(pws, KARG, KA_WS * 8)
        k.s_load(pwq, KARG, KA_WQ * 8)
        k.s_load(pw1, KARG, KA_W1 * 8)
        xcd, idx, m, n, u = sT[0], sT[1], sT[2], sT[3], sT[4]
        k.s("s_and_b32", xcd, WGID, 7)
        k.s("s_lshr_b32", idx, WGID, 3)
        k.s("s_mul_i32", u, xcd, 14)
        k.s("s_add_u32", u, u, idx)
        k.s("s_sub_u32", u, u, 16)
        k.s("s_lshl_b32", n, xcd, 1)
        k.s("s_lshr_b32", sT[5], idx, 3)
        k.s("s_add_u32", n, n, sT[5])
        csel(k, m, idx, idx, u)
        k.s("s_and_b32", m, m, 7)
        k.s("s_lshr_b32", u, u, 3)
        csel(k, n, idx, n, u)
        pW = sP.sub(6, 2)
        csel(k, pW[0], idx, pwq[0], pw1[0])
        csel(k, pW[1], idx, pwq[1], pw1[1])
        csel(k, R["sLdw"], idx, 8192, 7168)
        csel(k, R["sLdc"], idx, LD_Q, LD_H)
        k.s("s_mov_b32", R["sLda"], 2048)
        csel(k, R["sRelu"], idx, 0, 1)
        cofs, csz, wsz = sP[8], sP[9], sP[10]
        csel(k, cofs, idx, WS_Q, WS_H)
        csel(k, csz, idx, SZ_Q, SZ_H)
        csel(k, wsz, idx, SZ_WQ, SZ_W1)
        k.s("s_mov_b32", R["sLoop"], 1024 // BK // R["NST"] - (2 if R["NST"] > 2 else 1))
        o1, o2 = sP[11], sP[12]
        k.s("s_lshl_b32", o1, m, 19)
        k.s("s_add_u32", o2, o1, WS_XN)
        mk_srd(k, R["srdA"], pws, o2, 0)
        k.s("s_sub_u32", R["srdA"][2], SZ_XN, o1)
        k.s("s_lshl_b32", o1, n, 9)
        mk_srd(k, R["srdW"], pW, o1, 0)
        k.s("s_sub_u32", R["srdW"][2], wsz, o1)
        k.s("s_lshl_b32", o2, m, 8)
        k.s("s_mul_i32", o2, o2, R["sLdc"])
        k.s("s_add_u32", o1, o1, o2)
        k.s("s_add_u32", o2, o1, cofs)
        mk_srd(k, R["srdC"], pws, o2, 0)
        k.s("s_sub_u32", R["srdC"][2], csz, o1)

    kd = gen_gemm(name, 256, 256, 2, 2, decode, NWG, True)
    kd.update(grid=(NWG, 1, 1), block=(256, 1, 1))
    return kd


def gen_gemm2():
    name = "gemm2_kernel"
    NWG = 256

    def decode(k, R):
        sT, sP = R["sT"], R["sP"]
        pws, pwo, pw2 = sP.sub(0, 2), sP.sub(2, 2), sP.sub(4, 2)
        k.s_load(pws, KARG, KA_WS * 8)
        k.s_load(pwo, KARG, KA_WO * 8)
        k.s_load(pw2, KARG, KA_W2 * 8)
        xcd, idx, m, n = sT[0], sT[1], sT[2], sT[3]
        k.s("s_and_b32", xcd, WGID, 7)
        k.s("s_lshr_b32", idx, WGID, 3)
        k.s("s_bfe_u32", m, xcd, (1 << 16) | 1)
        k.s("s_lshl_b32", m, m, 3)
        k.s("s_and_b32", sT[4], idx, 7)
        k.s("s_add_u32", m, m, sT[4])
        k.s("s_and_b32", n, xcd, 1)
        k.s("s_lshl_b32", n, n, 2)
        k.s("s_lshr_b32", sT[4], idx, 3)
        k.s("s_add_u32", n, n, sT[4])
        k.s("s_lshr_b32", idx, xcd, 2)
        k.s("s_lshl_b32", idx, idx, 4)
        pW = sP.sub(6, 2)
        csel(k, pW[0], idx, pwo[0], pw2[0])
        csel(k, pW[1], idx, pwo[1], pw2[1])
        k.s("s_mov_b32", R["sLdw"], 2048)
        k.s("s_mov_b32", R["sLdc"], 2048)
        csel(k, R["sLda"], idx, LD_O, LD_H)
        k.s("s_mov_b32", R["sRelu"], 0)
        aofs, asz, wsz, cofs = sP[8], sP[9], sP[10], sP[13]
        csel(k, aofs, idx, WS_O, WS_H)
        csel(k, asz, idx, SZ_O, SZ_H)
        csel(k, wsz, idx, SZ_WO, SZ_W2)
        csel(k, cofs, idx, WS_S, WS_G)
        csel(k, R["sLoop"], idx, 4096 // BK // R["NST"] - (2 if R["NST"] > 2 else 1), 3584 // BK // R["NST"] - (2 if R["NST"] > 2 else 1))
        o1, o2 = sP[11], sP[12]
        k.s("s_lshl_b32", o1, m, 7)
        k.s("s_mul_i32", o1, o1, R["sLda"])
        if "sametile" in DIAG:
            k.s("s_mov_b32", o1, 0)
        k.s("s_add_u32", o2, o1, aofs)
        mk_srd(k, R["srdA"], pws, o2, 0)
        k.s("s_sub_u32", R["srdA"][2], asz, o1)
        k.s("s_lshl_b32", o1, n, 8)
        if "sametile" in DIAG:
            k.s("s_mov_b32", o1, 0)
        mk_srd(k, R["srdW"], pW, o1, 0)
        k.s("s_sub_u32", R["srdW"][2], wsz, o1)
        k.s("s_lshl_b32", o1, n, 8)
        k.s("s_lshl_b32", o2, m, 18)
        k.s("s_add_u32", o1, o1, o2)
        k.s("s_add_u32", o2, o1, cofs)
        mk_srd(k, R["srdC"], pws, o2, 0)
        k.s("s_sub_u32", R["srdC"][2], SZ_S, o1)

    kd = gen_gemm(name, 128, 128, 2, 2, decode, NWG, False, NST=4, regA=False)
    kd.update(grid=(NWG, 1, 1), block=(256, 1, 1))
    return kd
```

```python
from common import *
from k_elem import Neg
import k_gemm
from k_gemm import stamp, stamp_store, DIAG

MF = "v_mfma_f32_32x32x16_bf16"
NBLK = 16
KBUF, VBUF = 0, 32768
LDS_BYTES = 32768 + 3 * 16384

tid = V(0)
Qf = [V(4 + 4 * s, 4) for s in range(8)]
Oacc = [V(36 + 16 * db, 16) for db in range(4)]
Sset = [V(100, 16), V(116, 16)]
Pset = [V(132, 8), V(140, 8)]
Kf = [V(148 + 4 * s, 4) for s in range(8)]
Vf = [[V(180 + (db * 2 + ksx) * 4, 4) for ksx in range(2)] for db in range(4)]
X = [V(212 + i) for i in range(8)]
vM, l0, l1, lb0, lb1, mx, tA, tB = (V(220 + i) for i in range(8))
adK = [V(228 + s) for s in range(8)]
adV = [V(236 + db) for db in range(4)]
voK = [V(240), V(241)]
voV = [V(242), V(243)]
vQO = V(244)
T_ = [V(245 + i) for i in range(7)]
NVGPR = 252

srdQ, srdK, srdV, srdO = S(4, 4), S(8, 4), S(12, 4), S(16, 4)
sC, sWv, sOff = S(20), S(21), S(22)
sT = [S(24 + i) for i in range(8)]
sP = S(32, 8)
SCALE_LOG2E = 0.08838834764831845 * 1.4426950408889634


def sm_common(j):
    k = K()
    Sj, Pj = Sset[j & 1], Pset[j & 1]

    def tail(g):
        b = (g & 1) * 4
        if g == 0:
            k.v("v_add_f32", lb0, X[b], X[b + 1])
            k.v("v_add_f32", lb1, X[b + 2], X[b + 3])
        else:
            k.v("v_add_f32", lb0, lb0, X[b])
            k.v("v_add_f32", lb1, lb1, X[b + 1])
            k.v("v_add_f32", lb0, lb0, X[b + 2])
            k.v("v_add_f32", lb1, lb1, X[b + 3])
        k.v("v_cvt_pk_bf16_f32", Pj[2 * g], X[b], X[b + 1])
        k.v("v_cvt_pk_bf16_f32", Pj[2 * g + 1], X[b + 2], X[b + 3])

    for g in range(4):
        b = (g & 1) * 4
        for e in range(4):
            k.v("v_fma_f32", X[b + e], Sj[4 * g + e], sC, Neg(vM))
        if g == 0:
            k.v("v_max3_f32", mx, Sj[0], Sj[1], Sj[2])
        else:
            k.v("v_max3_f32", mx, mx, Sj[4 * g - 1], Sj[4 * g])
        for e in range(4):
            k.v("v_exp_f32", X[b + e], X[b + e])
        k.v("v_max3_f32", mx, mx, Sj[4 * g + 1], Sj[4 * g + 2])
        if g > 0:
            tail(g - 1)
    k.v("v_max_f32", mx, mx, Sj[15])
    tail(3)
    k.v("v_fma_f32", mx, mx, sC, Neg(vM))
    k.vcmp("v_cmp_lt_f32", VCC, 8.0, mx)
    return k.ins


def exact_max(k, j):
    Sj = Sset[j & 1]
    k.v("v_max3_f32", mx, Sj[0], Sj[1], Sj[2])
    for i in range(3, 15, 2):
        k.v("v_max3_f32", mx, mx, Sj[i], Sj[i + 1])
    k.v("v_max_f32", mx, mx, Sj[15])
    k.v("v_mov_b32", tA, mx)
    k.v("v_permlane32_swap_b32", mx, tA)
    k.v("v_max_f32", mx, mx, tA)


def sm_first():
    k = K()
    exact_max(k, 0)
    k.v("v_mul_f32", vM, sC, mx)
    ins = k.ins + sm_common(0)
    return [i for i in ins if not i.text.startswith("v_cmp_lt_f32")]


def fixup(j):
    k = K()
    Sj, Pj = Sset[j & 1], Pset[j & 1]
    k.label(f"attn_fix_{j}", landing=True)
    exact_max(k, j)
    k.v("v_mul_f32", tA, sC, mx)
    k.v("v_max_f32", tA, vM, tA)
    k.v("v_sub_f32", tB, vM, tA)
    k.v("v_exp_f32", tB, tB)
    k.v("v_mov_b32", vM, tA)
    for db in range(4):
        for i in range(16):
            k.v("v_mul_f32", Oacc[db][i], Oacc[db][i], tB)
    k.v("v_mul_f32", l0, l0, tB)
    k.v("v_mul_f32", l1, l1, tB)
    for g in range(4):
        for e in range(4):
            k.v("v_fma_f32", X[e], Sj[4 * g + e], sC, Neg(vM))
        for e in range(4):
            k.v("v_exp_f32", X[e], X[e])
        if g == 0:
            k.v("v_add_f32", lb0, X[0], X[1])
            k.v("v_add_f32", lb1, X[2], X[3])
        else:
            k.v("v_add_f32", lb0, lb0, X[0])
            k.v("v_add_f32", lb1, lb1, X[1])
            k.v("v_add_f32", lb0, lb0, X[2])
            k.v("v_add_f32", lb1, lb1, X[3])
        k.v("v_cvt_pk_bf16_f32", Pj[2 * g], X[0], X[1])
        k.v("v_cvt_pk_bf16_f32", Pj[2 * g + 1], X[2], X[3])
    k.nop(3)
    k.branch("s_branch", f"attn_ret_{j}")
    return k.ins


def k_reads(b):
    k = K()
    off = ((b >> 1) & 1) * 16384 + (b & 1) * 8192
    for s in range(8):
        k.ds_read("ds_read_b128", Kf[s], adK[s], off)
    return k.ins


def v_reads(b):
    k = K()
    st = b >> 1
    base = (st % 3) * 16384 + (b & 1) * 8192
    for db in range(4):
        for ksx in range(2):
            for tt in range(2):
                k.ds_read("ds_read_b64_tr_b16", Vf[db][ksx].sub(2 * tt, 2), adV[db],
                          base + (16 * ksx + 8 * tt) * 256)
    return k.ins


def dma_stage(which, t):
    k = K()
    if which == "K":
        lbase, vo, srd = KBUF + (t & 1) * 16384, voK, srdK
    else:
        lbase, vo, srd = VBUF + (t % 3) * 16384, voV, srdV
    k.s("s_mov_b32", sOff, t * 16384)
    for j in range(2):
        k.s("s_add_u32", M0, sWv, lbase + j * 1024)
        k.buf_load_lds(vo[j], srd, sOff)
    return k.ins


def qk(b):
    k = K()
    S_ = Sset[b & 1]
    for s in range(8):
        k.mfma(MF, S_, Kf[s], Qf[s], 0 if s == 0 else None)
    return k.ins


def pv(b):
    k = K()
    P_ = Pset[b & 1]
    for ksx in range(2):
        for db in range(4):
            k.mfma(MF, Oacc[db], Vf[db][ksx], P_.sub(4 * ksx, 4))
    return k.ins


def interleave(k, mfmas, fill_lists):
    n = len(mfmas)
    if n == 0:
        for ins, lo, hi in fill_lists:
            for i in ins:
                k.add(i)
        return
    slots = [[] for _ in range(n)]
    for ins, lo, hi in fill_lists:
        m = len(ins)
        for idx, i in enumerate(ins):
            slots[lo + (idx * (hi - lo)) // m].append(i)
    for m, sl in zip(mfmas, slots):
        k.add(m)
        for i in sl:
            k.add(i)


def gen_attn():
    name = "attn_kernel"
    NWG = 256
    k = K()
    k.s("s_cmp_ge_u32", WGID, NWG)
    k.branch("s_cbranch_scc1", f"{name}_end")
    stamp(k, 0)
    pws, pk, pvv = sP.sub(0, 2), sP.sub(2, 2), sP.sub(4, 2)
    k.s_load(pws, KARG, KA_WS * 8)
    k.s_load(pk, KARG, KA_K * 8)
    k.s_load(pvv, KARG, KA_V * 8)
    srdZ = S(40, 4)
    k.s("s_cmp_lg_u32", WGID, 0)
    k.branch("s_cbranch_scc1", f"{name}_noclr")
    mk_srd(k, srdZ, pws, WS_FLAGS, 512)
    k.v("v_lshlrev_b32", T_[0], 2, tid)
    k.v("v_mov_b32", T_[1], 0)
    k.buf_store(T_[1], T_[0], srdZ, 0)
    k.label(f"{name}_noclr", landing=True)
    xcd, idx, g, idd, head, qblk = sT[0], sT[1], sT[2], sT[3], sT[4], sT[5]
    k.s("s_and_b32", xcd, WGID, 7)
    k.s("s_lshr_b32", idx, WGID, 3)
    k.s("s_lshr_b32", g, xcd, 1)
    k.s("s_and_b32", idd, xcd, 1)
    k.s("s_lshl_b32", idd, idd, 5)
    k.s("s_add_u32", idd, idd, idx)
    k.s("s_lshr_b32", head, idd, 3)
    k.s("s_lshl_b32", sT[6], g, 3)
    k.s("s_add_u32", head, head, sT[6])
    k.s("s_and_b32", qblk, idd, 7)
    toff = sT[6]
    k.s("s_mul_i32", toff, qblk, 256 * LD_Q)
    k.s("s_lshl_b32", sT[7], head, 8)
    k.s("s_add_u32", toff, toff, sT[7])
    k.s("s_add_u32", sT[7], toff, WS_Q)
    mk_srd(k, srdQ, pws, sT[7], 0)
    k.s("s_sub_u32", srdQ[2], SZ_Q, toff)
    k.s("s_add_u32", sT[7], toff, WS_O)
    mk_srd(k, srdO, pws, sT[7], 0)
    k.s("s_sub_u32", srdO[2], SZ_O, toff)
    k.s("s_lshl_b32", sT[7], g, 19)
    k.s("s_add_u32", sT[7], sT[7], 1536 * 256)
    mk_srd(k, srdK, pk, sT[7], 512 * 256)
    mk_srd(k, srdV, pvv, sT[7], 512 * 256)
    k.s("s_mov_b32", sC, f32bits(SCALE_LOG2E))
    lane, wv = T_[0], T_[1]
    k.v("v_and_b32", lane, 63, tid)
    k.v("v_lshrrev_b32", wv, 6, tid)
    k.v("v_readfirstlane_b32", sT[0], wv)
    k.s("s_lshl_b32", sWv, sT[0], 11)
    t0, t1, t2 = T_[2], T_[3], T_[4]
    for j in range(2):
        k.v("v_lshrrev_b32", t0, 4, lane)
        k.v("v_lshl_add_u32", t0, wv, 3, t0)
        k.v("v_add_u32", t0, 4 * j, t0)
        k.v("v_and_b32", t1, 15, lane)
        k.v("v_and_b32", t2, 15, t0)
        k.v("v_xor_b32", t2, t2, t1)
        k.v("v_lshlrev_b32", t2, 4, t2)
        k.v("v_lshl_add_u32", voK[j], t0, 8, t2)
        k.v("v_and_b32", t2, 3, t0)
        k.v("v_lshlrev_b32", t2, 2, t2)
        k.v("v_xor_b32", t2, t2, t1)
        k.v("v_lshlrev_b32", t2, 4, t2)
        k.v("v_lshl_add_u32", voV[j], t0, 8, t2)
    for which, t in (("K", 0), ("V", 0), ("K", 1), ("V", 1), ("V", 2)):
        for i in dma_stage(which, t):
            k.add(i)
    k.v("v_and_b32", t0, 31, lane)
    k.v("v_lshl_add_u32", t0, wv, 5, t0)
    k.v("v_lshrrev_b32", t1, 5, lane)
    k.v("v_lshlrev_b32", t1, 4, t1)
    k.s("s_mov_b32", sT[7], LD_Q)
    k.v("v_mad_u32_u24", vQO, t0, sT[7], t1)
    for s in range(8):
        k.buf_load(Qf[s], vQO, srdQ, 0, offset=32 * s)
    hh, r31, l15 = T_[2], T_[3], T_[4]
    k.v("v_lshrrev_b32", hh, 5, lane)
    k.v("v_and_b32", r31, 31, lane)
    k.v("v_and_b32", l15, 15, lane)
    for s in range(8):
        k.v("v_add_u32", T_[5], 2 * s, hh)
        k.v("v_xor_b32", T_[5], T_[5], l15)
        k.v("v_lshlrev_b32", T_[5], 4, T_[5])
        k.v("v_lshl_add_u32", adK[s], r31, 8, T_[5])
    rr, cc, dsub = T_[2], T_[3], T_[4]
    k.v("v_bfe_u32", rr, lane, 2, 2)
    k.v("v_and_b32", cc, 3, lane)
    k.v("v_bfe_u32", dsub, lane, 4, 1)
    k.v("v_lshrrev_b32", T_[5], 5, lane)
    k.v("v_lshl_add_u32", T_[5], T_[5], 2, rr)
    k.v("v_lshlrev_b32", T_[5], 8, T_[5])
    k.v("v_and_b32", T_[6], 1, cc)
    k.v("v_lshl_add_u32", T_[5], T_[6], 3, T_[5])
    k.v("v_lshrrev_b32", T_[6], 1, cc)
    k.v("v_lshl_add_u32", T_[6], dsub, 1, T_[6])
    k.v("v_lshl_add_u32", T_[5], T_[6], 4, T_[5])
    k.v("v_add_u32", T_[5], VBUF, T_[5])
    for db in range(4):
        k.v("v_xor_b32", T_[6], db, rr)
        k.v("v_lshl_add_u32", adV[db], T_[6], 6, T_[5])
    for db in range(4):
        for i in range(16):
            k.v("v_mov_b32", Oacc[db][i], 0)
    k.v("v_mov_b32", l0, 0)
    k.v("v_mov_b32", l1, 0)
    k.waitcnt(vm=16)
    k.barrier()
    stamp(k, 1)
    for i in k_reads(0):
        k.add(i)

    for it in range(NBLK + 2):
        k.comment(f"---- iteration {it}")
        mf_qk = qk(it) if it < NBLK else []
        mf_pv = pv(it - 2) if 0 <= it - 2 < NBLK else []
        j = it - 1
        if j == 0:
            val = sm_first()
        elif 0 < j < NBLK:
            val = sm_common(j)
        else:
            val = []
        vr = v_reads(it - 2) if 0 <= it - 2 < NBLK else []
        kr = k_reads(it + 1) if it + 1 < NBLK else []
        if "attn_nosm" in DIAG:
            val = []
        if "attn_nolds" in DIAG:
            vr, kr = [], []
        dm = []
        if it & 1:
            t = (it - 1) // 2
            if t + 2 < 8:
                dm += dma_stage("K", t + 2)
            if t >= 2 and t + 1 < 8:
                dm += dma_stage("V", t + 1)
        mfmas = mf_qk + mf_pv
        nq, n = len(mf_qk), len(mf_qk) + len(mf_pv)
        fills = []
        if n:
            fills.append((val, 0, n))
            fills.append((vr, 0, max(nq, 1)))
            fills.append((kr, nq if nq < n else max(n - 1, 0), n))
            fills.append((dm, min(nq, n - 1), n))
            if nq == 0 and vr:
                for i in vr:
                    k.add(i)
                fills[1] = ([], 0, 1)
        interleave(k, mfmas, [f for f in fills if f[0]])
        if 1 <= j < NBLK:
            k.branch("s_cbranch_vccnz", f"attn_fix_{j}")
            k.label(f"attn_ret_{j}")
        if 0 <= j < NBLK:
            k.v("v_add_f32", l0, l0, lb0)
            k.v("v_add_f32", l1, l1, lb1)
        if (it & 1) == 0 and it <= 14:
            k.waitcnt(vm=0, lg=0)
            k.barrier()

    stamp(k, 2)
    k.v("v_add_f32", l0, l0, l1)
    k.v("v_mov_b32", tA, l0)
    k.v("v_permlane32_swap_b32", l0, tA)
    k.v("v_add_f32", l0, l0, tA)
    k.v("v_rcp_f32", tB, l0)
    cnt = 0
    for db in range(4):
        for pp in range(2):
            base = 100 + (cnt % 4) * 12
            cnt += 1
            tt, T = V(base, 8), V(base + 8, 4)
            for i in range(8):
                k.v("v_mul_f32", tt[i], Oacc[db][8 * pp + i], tB)
            for q in range(4):
                k.v("v_cvt_pk_bf16_f32", T[q], tt[2 * q], tt[2 * q + 1])
            k.v("v_permlane32_swap_b32", T[0], T[2])
            k.v("v_permlane32_swap_b32", T[1], T[3])
            k.buf_store(T, vQO, srdO, 0, offset=64 * db + 32 * pp)
    if "stamps" in DIAG:
        k.waitcnt(vm=0)
        stamp(k, 3)
        stamp_store(k, "attn", S(76, 4), pws)
    k.branch("s_branch", f"{name}_end")
    for j in range(1, NBLK):
        for i in fixup(j):
            k.add(i)
    k.label(f"{name}_end")
    k.endpgm()
    return dict(name=name, segs=[Seg(k.ins)], vgpr=NVGPR, sgpr=(96 if "stamps" in DIAG else 48), grid=(NWG, 1, 1), block=(512, 1, 1),
                lds=LDS_BYTES)
```

```python
from common import *

MF = "v_mfma_f32_16x16x32_bf16"
BK = 64


class G:
    pass


import os
DIAG = os.environ.get("GEMM_DIAG", "")


def stamp(k, i, fine=False):
    if "stamps2" in DIAG and not fine and i > 0:
        return
    if fine and "stamps2" not in DIAG:
        return
    if "stamps" in DIAG:
        k.raw(f"s_memtime s[{64 + 2 * i}:{65 + 2 * i}]", "smem", wr=[S(64 + 2 * i, 2)])
        if i == 0:
            k.raw("s_memrealtime s[80:81]", "smem", wr=[S(80, 2)])
        k.waitcnt(lg=0)


def stamp_store(k, name, srd_tmp, pws):
    if "stamps" not in DIAG:
        return
    k.raw("s_memrealtime s[72:73]", "smem", wr=[S(72, 2)])
    k.waitcnt(lg=0)
    mk_srd(k, srd_tmp, pws, (200 if name.startswith("gemm1") else (202 if name.startswith("attn") else 201)) * MiB, 1 << 20)
    k.v("v_lshlrev_b32", V(1), 6, 0) if False else None
    k.s("s_lshl_b32", S(74), WGID, 6)
    k.v("v_mov_b32", V(1), S(74))
    for i in range(10):
        k.v("v_mov_b32", V(2), S(64 + i))
        k.buf_store(V(2), V(1), srd_tmp, 0, offset=4 * i)
    for i in range(2):
        k.v("v_mov_b32", V(2), S(80 + i))
        k.buf_store(V(2), V(1), srd_tmp, 0, offset=40 + 4 * i)


def gen_gemm(name, BM, BN, WM, WN, decode, nwg, relu_possible, NST=2, regA=False, fused2=False):
    g = G()
    NW = WM * WN
    assert NW == 4
    TM, TN = BM // WM, BN // WN
    NMB, NNB = TM // 16, TN // 16
    PA, PW = BK * 2, BN * 2
    A_BYTES, W_BYTES = BM * PA, BK * PW
    STAGE = A_BYTES + W_BYTES
    cntA, cntW = A_BYTES // 1024 // NW, W_BYTES // 1024 // NW
    srdA, srdW, srdC = S(4, 4), S(8, 4), S(12, 4)
    sA, sW, stepW, sLoop = S(16), S(17), S(18), S(19)
    sLda, sLdw, sLdc, sRelu = S(20), S(21), S(22), S(23)
    sWvA, sWvW = S(24), S(25)
    sA2 = S(48)
    srdX, srdGt, srdF, sFlag = S(52, 4), S(56, 4), S(60, 4), S(50)
    sT = [S(26 + i) for i in range(6)]
    sP = S(32, 16)
    tid = V(0)
    FS = (NNB + NMB) * 4
    Wf = [[V(4 + X * FS + nb * 4, 4) for nb in range(NNB)] for X in range(2)]
    Af = [[V(4 + X * FS + NNB * 4 + mb * 4, 4) for mb in range(NMB)] for X in range(2)]
    vb = 4 + 2 * FS
    voA = [V(vb + j) for j in range(cntA)]
    vb += cntA
    voW = [V(vb + j) for j in range(cntW)]
    vb += cntW
    adA = [[V(vb + st * 2 + ks) for ks in range(2)] for st in range(NST)]
    vb += 2 * NST
    adW = [[V(vb + st * NNB + nb) for nb in range(NNB)] for st in range(NST)]
    vb += NST * NNB
    tmp = [V(vb + i) for i in range(12)]
    vb += 12
    if regA:
        vb = (vb + 3) // 4 * 4
        stg = [V(vb + 4 * j, 4) for j in range(cntA)]
        vb += 4 * cntA
        adWr = [V(vb + st) for st in range(NST)]
        vb += NST
    if fused2:
        vb = (vb + 3) // 4 * 4
        epG = [V(vb + 4 * i, 4) for i in range(NMB * NNB // 2)]
        vb += 4 * (NMB * NNB // 2)
        epT = [V(vb + i) for i in range(16)]
        vb += 16
    nvgpr = vb
    acc = [[A((nb * NMB + mb) * 4, 4) for mb in range(NMB)] for nb in range(NNB)]
    nagpr = NNB * NMB * 4

    k = K()
    k.s("s_cmp_ge_u32", WGID, nwg)
    k.branch("s_cbranch_scc1", f"{name}_end")
    stamp(k, 0)
    decode(k, dict(srdA=srdA, srdW=srdW, srdC=srdC, sLda=sLda, sLdw=sLdw, sLdc=sLdc, sRelu=sRelu,
                   sLoop=sLoop, sT=sT, sP=sP, BM=BM, BN=BN, NST=NST,
                   srdX=srdX, srdGt=srdGt, srdF=srdF, sFlag=sFlag))
    stamp(k, 1, fine=True)
    lane, wv = tmp[0], tmp[1]
    k.v("v_and_b32", lane, 63, tid)
    k.v("v_lshrrev_b32", wv, 6, tid)
    k.v("v_readfirstlane_b32", sT[0], wv)
    k.s("s_mul_i32", sWvA, sT[0], cntA * 1024)
    k.s("s_mul_i32", sWvW, sT[0], cntW * 1024)
    k.s("s_mov_b32", sA, 0)
    k.s("s_mov_b32", sW, 0)
    k.s("s_lshl_b32", stepW, sLdw, 6)

    def dma_voffs(dst, P, cnt, is_w):
        RPI = 1024 // P
        cpr = P // 16
        lg = cpr.bit_length() - 1
        pc, rowb, row, t, t2 = tmp[2], tmp[3], tmp[4], tmp[5], tmp[6]
        outs = []
        for j in range(cnt):
            kb = K()
            if j == 0:
                kb.v("v_and_b32", pc, cpr - 1, lane)
                kb.v("v_lshrrev_b32", rowb, lg, lane)
                kb.v("v_mad_u32_u24", rowb, wv, cnt * RPI, rowb)
            kb.v("v_add_u32", row, j * RPI, rowb)
            if not is_w:
                kb.v("v_bfe_u32", t, row, 1, 3)
                kb.v("v_xor_b32", t, t, pc)
                kb.v("v_lshlrev_b32", t, 4, t)
                kb.v("v_mad_u32_u24", dst[j], row, sLda, t)
            else:
                kb.v("v_and_b32", t, 3, row)
                kb.v("v_bfe_u32", t2, row, 3, 1)
                kb.v("v_lshl_or_b32", t, t2, 2, t)
                kb.v("v_lshrrev_b32", t2, 1, pc)
                kb.v("v_xor_b32", t, t, t2)
                kb.v("v_lshlrev_b32", t, 5, t)
                kb.v("v_and_b32", t2, 1, pc)
                kb.v("v_lshl_or_b32", t, t2, 4, t)
                kb.v("v_mad_u32_u24", dst[j], row, sLdw, t)
            outs.append(kb.ins)
        return outs

    voff_calc = dma_voffs(voA, PA, cntA, False) + dma_voffs(voW, PW, cntW, True)

    def dma_group(kk, stage_par, withA=True):
        out = []
        if not withA:
            for j in range(cntA):
                kb = K()
                kb.ds_write("ds_write_b128", adWr[stage_par], stg[j], j * 1024)
                kb.buf_load(stg[j], voA[j], srdA, sA2)
                out.append(kb.ins)
        for j in range(cntA if withA else 0):
            kb = K()
            kb.s("s_add_u32", M0, sWvA, stage_par * STAGE + j * 1024)
            kb.buf_load_lds(voA[j], srdA, sA)
            out.append(kb.ins)
        for j in range(cntW):
            kb = K()
            kb.s("s_add_u32", M0, sWvW, stage_par * STAGE + A_BYTES + j * 1024)
            kb.buf_load_lds(voW[j], srdW, sW)
            out.append(kb.ins)
        return out

    def adv_k():
        kb = K()
        kb.s("s_add_u32", sA, sA, BK * 2)
        if regA:
            kb.s("s_add_u32", sA2, sA2, BK * 2)
        kb.s("s_add_u32", sW, sW, stepW)
        return kb.ins

    PRO_ST = min(NST, 2)
    for pr, calc in zip(dma_group(k, 0), voff_calc):
        k.add(pr[0])
        for i in calc:
            k.add(i)
        k.add(pr[1])
    for i in adv_k():
        k.add(i)
    main_k = k
    k = K()
    stamp(k, 2, fine=True)
    if regA:
        k.s("s_mov_b32", sA2, NST * BK * 2)
        for j in range(cntA):
            k.buf_load(stg[j], voA[j], srdA, sA2)
        k.s("s_add_u32", sA2, sA2, BK * 2)
        k.v("v_lshlrev_b32", tmp[2], 4, lane)
        k.v("v_lshl_add_u32", adWr[0], wv, (cntA * 1024).bit_length() - 1, tmp[2])
        for st in range(1, NST):
            k.v("v_add_u32", adWr[st], st * STAGE, adWr[0])
    wm, wn = tmp[2], tmp[3]
    k.v("v_lshrrev_b32", wm, (WN.bit_length() - 1), wv)
    k.v("v_and_b32", wn, WN - 1, wv)
    l15, lq, t, t2 = tmp[4], tmp[5], tmp[6], tmp[7]
    k.v("v_and_b32", l15, 15, lane)
    k.v("v_lshrrev_b32", lq, 4, lane)
    k.v("v_mul_u32_u24", t, TM, wm)
    k.v("v_add_u32", t, t, l15)
    k.v("v_lshlrev_b32", t, 7, t)
    k.v("v_lshrrev_b32", t2, 1, l15)
    k.v("v_xor_b32", t2, t2, lq)
    k.v("v_lshl_add_u32", adA[0][0], t2, 4, t)
    k.v("v_xor_b32", adA[0][1], 64, adA[0][0])
    for st in range(1, NST):
        for ks in range(2):
            k.v("v_add_u32", adA[st][ks], st * STAGE, adA[0][ks])
    gq, rr, cc, f = tmp[8], tmp[9], tmp[10], tmp[11]
    k.v("v_lshrrev_b32", gq, 4, lane)
    k.v("v_bfe_u32", rr, lane, 2, 2)
    k.v("v_and_b32", cc, 3, lane)
    k.v("v_and_b32", f, 1, gq)
    k.v("v_lshl_or_b32", f, f, 2, rr)
    k.v("v_lshl_add_u32", t, gq, 3, rr)
    k.v("v_mul_u32_u24", t, PW, t)
    k.v("v_lshl_add_u32", t, cc, 3, t)
    k.v("v_add_u32", t, A_BYTES, t)
    for nb in range(NNB):
        k.v("v_mul_u32_u24", t2, NNB, wn)
        k.v("v_add_u32", t2, nb, t2)
        k.v("v_xor_b32", t2, t2, f)
        k.v("v_lshl_add_u32", adW[0][nb], t2, 5, t)
        for st in range(1, NST):
            k.v("v_add_u32", adW[st][nb], st * STAGE, adW[0][nb])
    for nb in range(NNB):
        for mb in range(NMB):
            for r in range(4):
                k.v("v_accvgpr_write_b32", acc[nb][mb][r], 0)

    setup = k.ins
    k = main_k
    if PRO_ST > 1:
        grp = dma_group(k, 1)
        per = (len(setup) + len(grp) - 1) // len(grp)
        for gi, pr in enumerate(grp):
            k.add(pr[0])
            for i in setup[gi * per:(gi + 1) * per]:
                k.add(i)
            k.add(pr[1])
        for i in adv_k():
            k.add(i)
    else:
        for i in setup:
            k.add(i)

    def reads(X, st, ks):
        out = []
        seq = []
        for i in range(max(NMB, NNB)):
            if i < NNB:
                seq.append(("W", i))
            if i < NMB:
                seq.append(("A", i))
        for typ, i in seq:
            if typ == "A":
                kb = K()
                kb.ds_read("ds_read_b128", Af[X][i], adA[st][ks], i * 16 * PA)
                out += kb.ins
            else:
                for tt in range(2):
                    kb = K()
                    kb.ds_read("ds_read_b64_tr_b16", Wf[X][i].sub(2 * tt, 2), adW[st][i],
                               ks * 32 * PW + tt * 4 * PW)
                    out += kb.ins
        return out

    CPS = cntA + cntW
    k.waitcnt(vm=(PRO_ST - 1) * CPS)
    k.barrier()
    stamp(k, 1)
    stamp(k, 3, fine=True)
    for i in reads(0, 0, 0):
        k.add(i)
    pro = k.ins

    def substep(X, rd, dmas, extra):
        kb = K()
        mf = []
        for nb in range(NNB):
            for mb in range(NMB):
                mf.append((nb, mb))
        n = len(mf)
        slots = [[] for _ in range(n)]
        span = max(1, (n * 3) // 4)
        for i, r in enumerate(rd):
            slots[(i * span) // max(1, len(rd))].append(r)
        seq = [i for pr in dmas for i in pr]
        for i, ins_ in enumerate(seq):
            slots[1 + (i * (n - 1)) // max(1, len(seq))].append(ins_)
        for e in extra:
            slots[n - 1].append(e)
        for i, (nb, mb) in enumerate(mf):
            if "nomfma" not in DIAG:
                kb.mfma(MF, acc[nb][mb], Wf[X][nb], Af[X][mb])
            for s_ in slots[i]:
                if "nomfma" in DIAG and s_.kind == "ds":
                    continue
                kb.add(s_)
        return kb.ins

    def stage_code(par, do_dma, do_next_read, last, vmn=None, ramp=False):
        out = []
        rdm, rex = [], []
        if ramp:
            for st in range(PRO_ST, NST):
                rdm += dma_group(None, st)
                rdm.append((adv_k()[0], adv_k()[1]))
        out += substep(0, reads(1, par, 1), rdm, [])
        if not last:
            kb = K()
            kb.waitcnt(vm=((NST - 2) * CPS if vmn is None else vmn), lg=0)
            kb.barrier()
            out += kb.ins
        rd = reads(0, (par + 1) % NST, 0) if do_next_read else []
        dm = dma_group(None, par, withA=not regA) if (do_dma and "nodma" not in DIAG) else []
        ex = adv_k() if do_dma else []
        out += substep(1, rd, dm, ex)
        return out

    first = K()
    if NST > PRO_ST:
        for par in range(NST):
            for i in stage_code(par, True, True, False, ramp=(par == 0)):
                first.add(i)
    body = K()
    body.label(f"{name}_loop")
    for par in range(NST):
        for i in stage_code(par, True, True, False):
            body.add(i)
    body.s("s_sub_u32", sLoop, sLoop, 1)
    body.s("s_cmp_lg_u32", sLoop, 0)
    body.branch("s_cbranch_scc1", f"{name}_loop")

    tail = K()
    for par in range(NST):
        for i in stage_code(par, False, par < NST - 1, par == NST - 1, vmn=max(0, NST - 2 - par) * CPS):
            tail.add(i)

    k = tail
    stamp(k, 2)
    vC = tmp[0]
    k.v("v_and_b32", l15, 15, tid)
    k.v("v_lshrrev_b32", wv, 6, tid)
    k.v("v_lshrrev_b32", wm, (WN.bit_length() - 1), wv)
    k.v("v_and_b32", wn, WN - 1, wv)
    k.v("v_mul_u32_u24", t, TM, wm)
    k.v("v_add_u32", t, t, l15)
    k.v("v_mul_u32_u24", t2, TN * 2, wn)
    k.v("v_mad_u32_u24", vC, t, sLdc, t2)
    k.v("v_bfe_u32", lq, tid, 4, 2)
    k.v("v_and_b32", t, 1, lq)
    k.v("v_lshlrev_b32", t, 5, t)
    k.v("v_lshrrev_b32", t2, 1, lq)
    k.v("v_lshl_or_b32", t, t2, 4, t)
    k.v("v_add_u32", vC, vC, t)
    sRow = sT[1]
    NSET = 4

    def epi(relu):
        cnt = 0
        for mb in range(NMB):
            if mb == 0:
                k.s("s_mov_b32", sRow, 0)
            else:
                k.s("s_lshl_b32", sT[2], sLdc, 4)
                k.s("s_add_u32", sRow, sRow, sT[2])
            for p in range(NNB // 2):
                base = 4 + (cnt % NSET) * 12
                cnt += 1
                tt = V(base, 8)
                T = V(base + 8, 4)
                for u in range(2):
                    for r in range(4):
                        k.v("v_accvgpr_read_b32", tt[u * 4 + r], acc[2 * p + u][mb][r])
                for q in range(4):
                    k.v("v_cvt_pk_bf16_f32", T[q], tt[2 * q], tt[2 * q + 1])
                k.v("v_permlane16_swap_b32", T[0], T[2])
                k.v("v_permlane16_swap_b32", T[1], T[3])
                if relu:
                    for q in range(4):
                        k.v("v_pk_max_i16", T[q], T[q], 0)
                k.buf_store(T, vC, srdC, sRow, offset=p * 64)

    MASK = 0xFFFF0000

    def groups():
        cnt = 0
        for mb in range(NMB):
            for p in range(NNB // 2):
                yield cnt, mb, p
                cnt += 1

    def row_off(mb):
        return mb * 16 * 2048

    def epi_silu_pub():
        for cnt, mb, p in groups():
            base = 4 + (cnt % NSET) * 12
            tt, T = V(base, 8), V(base + 8, 4)
            for u in range(2):
                for r in range(4):
                    k.v("v_accvgpr_read_b32", tt[u * 4 + r], acc[2 * p + u][mb][r])
            for q in range(4):
                k.v("v_cvt_pk_bf16_f32", T[q], tt[2 * q], tt[2 * q + 1])
            for q in range(4):
                z0, z1, e0, e1 = tt[0], tt[1], tt[2], tt[3]
                if q & 1:
                    z0, z1, e0, e1 = tt[4], tt[5], tt[6], tt[7]
                k.v("v_lshlrev_b32", z0, 16, T[q])
                k.v("v_and_b32", z1, MASK, T[q])
                k.v("v_mul_f32", e0, -1.4426950408889634, z0)
                k.v("v_mul_f32", e1, -1.4426950408889634, z1)
                k.v("v_exp_f32", e0, e0)
                k.v("v_exp_f32", e1, e1)
                k.v("v_add_f32", e0, 1.0, e0)
                k.v("v_add_f32", e1, 1.0, e1)
                k.v("v_rcp_f32", e0, e0)
                k.v("v_rcp_f32", e1, e1)
                k.v("v_mul_f32", z0, z0, e0)
                k.v("v_mul_f32", z1, z1, e1)
                k.v("v_cvt_pk_bf16_f32", T[q], z0, z1)
            k.v("v_permlane16_swap_b32", T[0], T[2])
            k.v("v_permlane16_swap_b32", T[1], T[3])
            k.buf_store(T, vC, srdC, 0, offset=p * 64 + 0, flags="sc1") if mb == 0 else None
            if mb:
                k.s("s_mov_b32", sRow, row_off(mb))
                k.buf_store(T, vC, srdC, sRow, offset=p * 64, flags="sc1")
        k.waitcnt(vm=0)
        k.barrier()
        k.v("v_lshrrev_b32", tmp[1], 6, tid)
        k.v("v_readfirstlane_b32", sT[3], tmp[1])
        k.s("s_cmp_lg_u32", sT[3], 0)
        k.branch("s_cbranch_scc1", f"{name}_end")
        k.v("v_mov_b32", tmp[2], sFlag)
        k.v("v_mov_b32", tmp[3], 1)
        k.buf_store(tmp[3], tmp[2], srdF, 0, flags="sc1")

    def epi_combine():
        Spk = [V(4 + 4 * i, 4) for i in range(NMB * NNB // 2)]
        Xr = [V(4 + 4 * (NMB * NNB // 2) + 4 * i, 4) for i in range(NMB * NNB // 2)]
        for cnt, mb, p in groups():
            k.s("s_mov_b32", sRow, row_off(mb))
            k.buf_load(Xr[cnt], vC, srdX, sRow, offset=p * 64)
        for cnt, mb, p in groups():
            tt = V(epT[0].idx, 8)
            T = Spk[cnt]
            for u in range(2):
                for r in range(4):
                    k.v("v_accvgpr_read_b32", tt[u * 4 + r], acc[2 * p + u][mb][r])
            for q in range(4):
                k.v("v_cvt_pk_bf16_f32", T[q], tt[2 * q], tt[2 * q + 1])
            k.v("v_permlane16_swap_b32", T[0], T[2])
            k.v("v_permlane16_swap_b32", T[1], T[3])
        k.v("v_lshrrev_b32", tmp[1], 6, tid)
        k.v("v_readfirstlane_b32", sT[3], tmp[1])
        k.s("s_cmp_lg_u32", sT[3], 0)
        k.branch("s_cbranch_scc1", f"{name}_flag_ok")
        k.v("v_mov_b32", tmp[2], sFlag)
        k.s("s_mov_b32", sT[4], 1 << 22)
        k.label(f"{name}_poll")
        k.buf_load(tmp[3], tmp[2], srdF, 0, flags="sc1")
        k.waitcnt(vm=0)
        k.v("v_readfirstlane_b32", sT[5], tmp[3])
        k.s("s_cmp_lg_u32", sT[5], 0)
        k.branch("s_cbranch_scc1", f"{name}_flag_ok")
        k.raw("s_sleep 4", "other")
        k.s("s_sub_u32", sT[4], sT[4], 1)
        k.s("s_cmp_lg_u32", sT[4], 0)
        k.branch("s_cbranch_scc1", f"{name}_poll")
        k.label(f"{name}_flag_ok", landing=True)
        k.barrier()
        for cnt, mb, p in groups():
            k.s("s_mov_b32", sRow, row_off(mb))
            k.buf_load(epG[cnt], vC, srdGt, sRow, offset=p * 64, flags="sc1")
        for cnt, mb, p in groups():
            T, Gq, Xq = Spk[cnt], epG[cnt], Xr[cnt]
            for q in range(4):
                s0, s1, g0, g1, x0, x1, pp = (epT[(q & 1) * 8 + i] for i in range(7))
                k.v("v_lshlrev_b32", s0, 16, T[q])
                k.v("v_and_b32", s1, MASK, T[q])
                k.v("v_lshlrev_b32", g0, 16, Gq[q])
                k.v("v_and_b32", g1, MASK, Gq[q])
                k.v("v_mul_f32", s0, s0, g0)
                k.v("v_mul_f32", s1, s1, g1)
                k.v("v_cvt_pk_bf16_f32", pp, s0, s1)
                k.v("v_lshlrev_b32", s0, 16, pp)
                k.v("v_and_b32", s1, MASK, pp)
                k.v("v_lshlrev_b32", x0, 16, Xq[q])
                k.v("v_and_b32", x1, MASK, Xq[q])
                k.v("v_add_f32", x0, x0, s0)
                k.v("v_add_f32", x1, x1, s1)
                k.v("v_cvt_pk_bf16_f32", T[q], x0, x1)
            k.s("s_mov_b32", sRow, row_off(mb))
            k.buf_store(T, vC, srdC, sRow, offset=p * 64)

    if fused2:
        k.s("s_cmp_eq_u32", sRelu, 0)
        k.branch("s_cbranch_scc1", f"{name}_epi_plain")
        epi_silu_pub()
        k.branch("s_branch", f"{name}_end")
        k.label(f"{name}_epi_plain", landing=True)
        epi_combine()
    else:
        if relu_possible:
            k.s("s_cmp_eq_u32", sRelu, 0)
            k.branch("s_cbranch_scc1", f"{name}_epi_plain")
            epi(True)
            if "stamps" in DIAG:
                k.waitcnt(vm=0)
                stamp(k, 3)
                stamp_store(k, name, S(76, 4), sP.sub(0, 2))
            k.branch("s_branch", f"{name}_end")
            k.label(f"{name}_epi_plain", landing=True)
        epi(False)
        if "stamps" in DIAG:
            k.waitcnt(vm=0)
            stamp(k, 3)
            stamp_store(k, name, S(76, 4), sP.sub(0, 2))
    k.label(f"{name}_end")
    k.endpgm()

    segs = [Seg(pro + first.ins), Seg(body.ins, loop=True), Seg(tail.ins)]
    return dict(name=name, segs=segs, vgpr=max(nvgpr, 8), agpr=nagpr, sgpr=(96 if "stamps" in DIAG else 64), lds=NST * STAGE)


def csel(k, dst, idx, a, b):
    if isinstance(b, int) and isinstance(a, int):
        k.s("s_mov_b32", dst, b)
        b = dst
    k.s("s_cmp_lt_u32", idx, 16)
    k.s("s_cselect_b32", dst, a, b)


def gen_gemm1():
    name = "gemm1_kernel"
    NWG = 240

    def decode(k, R):
        sT, sP = R["sT"], R["sP"]
        pws, pwq, pw1 = sP.sub(0, 2), sP.sub(2, 2), sP.sub(4, 2)
        k.s_load(pws, KARG, KA_WS * 8)
        k.s_load(pwq, KARG, KA_WQ * 8)
        k.s_load(pw1, KARG, KA_W1 * 8)
        xcd, idx, m, n, u = sT[0], sT[1], sT[2], sT[3], sT[4]
        k.s("s_and_b32", xcd, WGID, 7)
        k.s("s_lshr_b32", idx, WGID, 3)
        k.s("s_mul_i32", u, xcd, 14)
        k.s("s_add_u32", u, u, idx)
        k.s("s_sub_u32", u, u, 16)
        k.s("s_lshl_b32", n, xcd, 1)
        k.s("s_lshr_b32", sT[5], idx, 3)
        k.s("s_add_u32", n, n, sT[5])
        csel(k, m, idx, idx, u)
        k.s("s_and_b32", m, m, 7)
        k.s("s_lshr_b32", u, u, 3)
        csel(k, n, idx, n, u)
        pW = sP.sub(6, 2)
        csel(k, pW[0], idx, pwq[0], pw1[0])
        csel(k, pW[1], idx, pwq[1], pw1[1])
        csel(k, R["sLdw"], idx, 8192, 7168)
        csel(k, R["sLdc"], idx, LD_Q, LD_H)
        k.s("s_mov_b32", R["sLda"], 2048)
        csel(k, R["sRelu"], idx, 0, 1)
        cofs, csz, wsz = sP[8], sP[9], sP[10]
        csel(k, cofs, idx, WS_Q, WS_H)
        csel(k, csz, idx, SZ_Q, SZ_H)
        csel(k, wsz, idx, SZ_WQ, SZ_W1)
        k.s("s_mov_b32", R["sLoop"], 1024 // BK // R["NST"] - (2 if R["NST"] > 2 else 1))
        o1, o2 = sP[11], sP[12]
        k.s("s_lshl_b32", o1, m, 19)
        k.s("s_add_u32", o2, o1, WS_XN)
        mk_srd(k, R["srdA"], pws, o2, 0)
        k.s("s_sub_u32", R["srdA"][2], SZ_XN, o1)
        k.s("s_lshl_b32", o1, n, 9)
        mk_srd(k, R["srdW"], pW, o1, 0)
        k.s("s_sub_u32", R["srdW"][2], wsz, o1)
        k.s("s_lshl_b32", o2, m, 8)
        k.s("s_mul_i32", o2, o2, R["sLdc"])
        k.s("s_add_u32", o1, o1, o2)
        k.s("s_add_u32", o2, o1, cofs)
        mk_srd(k, R["srdC"], pws, o2, 0)
        k.s("s_sub_u32", R["srdC"][2], csz, o1)

    kd = gen_gemm(name, 256, 256, 2, 2, decode, NWG, True)
    kd.update(grid=(NWG, 1, 1), block=(256, 1, 1))
    return kd


def gen_gemm2():
    name = "gemm2_kernel"
    NWG = 256

    def decode(k, R):
        sT, sP = R["sT"], R["sP"]
        pws, pwo, pw2 = sP.sub(0, 2), sP.sub(2, 2), sP.sub(4, 2)
        k.s_load(pws, KARG, KA_WS * 8)
        k.s_load(pwo, KARG, KA_WO * 8)
        k.s_load(pw2, KARG, KA_W2 * 8)
        k.s_load(R["srdC"].sub(0, 2), KARG, KA_OUT * 8)
        k.s_load(R["srdX"].sub(0, 2), KARG, KA_X * 8)
        xcd, idx, m, n = sT[0], sT[1], sT[2], sT[3]
        k.s("s_and_b32", xcd, WGID, 7)
        k.s("s_lshr_b32", idx, WGID, 3)
        k.s("s_bfe_u32", m, xcd, (1 << 16) | 1)
        k.s("s_lshl_b32", m, m, 3)
        k.s("s_and_b32", sT[4], idx, 7)
        k.s("s_add_u32", m, m, sT[4])
        k.s("s_and_b32", n, xcd, 1)
        k.s("s_lshl_b32", n, n, 2)
        k.s("s_lshr_b32", sT[4], idx, 3)
        k.s("s_add_u32", n, n, sT[4])
        k.s("s_lshr_b32", idx, xcd, 2)
        k.s("s_lshl_b32", idx, idx, 4)
        pW = sP.sub(6, 2)
        csel(k, pW[0], idx, pwo[0], pw2[0])
        csel(k, pW[1], idx, pwo[1], pw2[1])
        k.s("s_mov_b32", R["sLdw"], 2048)
        k.s("s_mov_b32", R["sLdc"], 2048)
        csel(k, R["sLda"], idx, LD_O, LD_H)
        csel(k, R["sRelu"], idx, 0, 1)
        aofs, asz, wsz, cofs = sP[8], sP[9], sP[10], sP[13]
        csel(k, aofs, idx, WS_O, WS_H)
        csel(k, asz, idx, SZ_O, SZ_H)
        csel(k, wsz, idx, SZ_WO, SZ_W2)
        csel(k, R["sLoop"], idx, 4096 // BK // R["NST"] - (2 if R["NST"] > 2 else 1), 3584 // BK // R["NST"] - (2 if R["NST"] > 2 else 1))
        o1, o2 = sP[11], sP[12]
        k.s("s_lshl_b32", o1, m, 7)
        k.s("s_mul_i32", o1, o1, R["sLda"])
        if "sametile" in DIAG:
            k.s("s_mov_b32", o1, 0)
        k.s("s_add_u32", o2, o1, aofs)
        mk_srd(k, R["srdA"], pws, o2, 0)
        k.s("s_sub_u32", R["srdA"][2], asz, o1)
        k.s("s_lshl_b32", o1, n, 8)
        if "sametile" in DIAG:
            k.s("s_mov_b32", o1, 0)
        mk_srd(k, R["srdW"], pW, o1, 0)
        k.s("s_sub_u32", R["srdW"][2], wsz, o1)
        k.s("s_lshl_b32", o1, n, 8)
        k.s("s_lshl_b32", o2, m, 18)
        k.s("s_add_u32", o1, o1, o2)
        csel(k, R["srdC"][0], idx, R["srdC"][0], pws[0])
        csel(k, R["srdC"][1], idx, R["srdC"][1], pws[1])
        csel(k, cofs, idx, 0, WS_G)
        k.s("s_add_u32", o2, o1, cofs)
        mk_srd(k, R["srdC"], R["srdC"].sub(0, 2), o2, 0)
        k.s("s_sub_u32", R["srdC"][2], SZ_OUT, o1)
        mk_srd(k, R["srdX"], R["srdX"].sub(0, 2), o1, 0)
        k.s("s_sub_u32", R["srdX"][2], SZ_X, o1)
        k.s("s_add_u32", o2, o1, WS_G)
        mk_srd(k, R["srdGt"], pws, o2, 0)
        k.s("s_sub_u32", R["srdGt"][2], SZ_G, o1)
        mk_srd(k, R["srdF"], pws, WS_FLAGS, 512)
        k.s("s_lshl_b32", R["sFlag"], m, 3)
        k.s("s_add_u32", R["sFlag"], R["sFlag"], n)
        k.s("s_lshl_b32", R["sFlag"], R["sFlag"], 2)

    kd = gen_gemm(name, 128, 128, 2, 2, decode, NWG, False, NST=4, regA=False, fused2=True)
    kd.update(grid=(NWG, 1, 1), block=(256, 1, 1))
    return kd
```

```python
import sys
import os

sys.path.insert(0, os.path.dirname(os.path.abspath(__file__)))
from common import *
import k_elem

NAME = "recurrent_scan__sliding_block_cached__dense_activation_relu__prompt"
OUT = f"cdna_kernels/{NAME}.s"

HEADER = """; Kernarg layout for this problem (88 bytes, ptrs only, base s[0:1]):
"""


def emit_kernel(kd):
    flat = finalize(kd["segs"])
    name = kd["name"]
    txt = [f".globl {name}", ".p2align 8", f".type {name},@function", f"{name}:", render(flat)]
    return "\n".join(txt)


def emit_desc(kd):
    name = kd["name"]
    arch = kd["vgpr"]
    acc = kd.get("agpr", 0)
    accum_off = (arch + 3) // 4 * 4
    nfv = accum_off + acc if acc else arch
    return f""".amdhsa_kernel {name}
  .amdhsa_next_free_vgpr {nfv}
  .amdhsa_next_free_sgpr {kd['sgpr']}
  .amdhsa_accum_offset {accum_off}
  .amdhsa_group_segment_fixed_size 0
  .amdhsa_kernarg_size 88
  .amdhsa_user_sgpr_count 2
  .amdhsa_user_sgpr_kernarg_segment_ptr 1
  .amdhsa_system_sgpr_workgroup_id_x 1
  .amdhsa_float_denorm_mode_32 3
.end_amdhsa_kernel"""


def build(kernels, path=OUT):
    lines = [HEADER.rstrip("\n")]
    for kd in kernels:
        g, b = kd["grid"], kd["block"]
        lines.append(f"; @launch kernel={kd['name']} grid=({g[0]},{g[1]},{g[2]}) block=({b[0]},{b[1]},{b[2]}) lds={kd['lds']}")
    lines.append('.amdgcn_target "amdgcn-amd-amdhsa--gfx950"')
    lines.append(".text")
    seen = set()
    for kd in kernels:
        if kd["name"] in seen:
            continue
        seen.add(kd["name"])
        lines.append(emit_kernel(kd))
    lines.append('.section .rodata,"a"')
    seen = set()
    for kd in kernels:
        if kd["name"] in seen:
            continue
        seen.add(kd["name"])
        lines.append(".p2align 6")
        lines.append(emit_desc(kd))
    txt = "\n".join(lines) + "\n"
    open(path, "w").write(txt)
    return txt


def main():
    which = sys.argv[1] if len(sys.argv) > 1 else "all"
    ks = [] if os.environ.get('LNPRE') else [k_elem.gen_ln()]
    if which in ("all", "gemm1"):
        import k_gemm
        ks.append(k_gemm.gen_gemm1())
    if which == "all":
        import k_attn
        ks.append(k_attn.gen_attn())
        ks.append(k_gemm.gen_gemm2())
        if os.environ.get("DUP") == "gemm2":
            ks.append(ks[-1])
        if not os.environ.get("NOFUSE"):
            pass
        else:
            ks.append(k_elem.gen_combine(NAME + "_kernel"))
    txt = build(ks)
    print("wrote", len(txt), "bytes")


if __name__ == "__main__":
    main()
```

```python
from common import *

MF = "v_mfma_f32_16x16x32_bf16"
BK = 64


class G:
    pass


import os
DIAG = os.environ.get("GEMM_DIAG", "")


def stamp(k, i, fine=False):
    if "stamps2" in DIAG and not fine and i > 0:
        return
    if fine and "stamps2" not in DIAG:
        return
    if "stamps" in DIAG:
        k.raw(f"s_memtime s[{64 + 2 * i}:{65 + 2 * i}]", "smem", wr=[S(64 + 2 * i, 2)])
        if i == 0:
            k.raw("s_memrealtime s[80:81]", "smem", wr=[S(80, 2)])
        k.waitcnt(lg=0)


def stamp_store(k, name, srd_tmp, pws):
    if "stamps" not in DIAG:
        return
    k.raw("s_memrealtime s[72:73]", "smem", wr=[S(72, 2)])
    k.waitcnt(lg=0)
    mk_srd(k, srd_tmp, pws, (200 if name.startswith("gemm1") else (202 if name.startswith("attn") else 201)) * MiB, 1 << 20)
    k.v("v_lshlrev_b32", V(1), 6, 0) if False else None
    k.s("s_lshl_b32", S(74), WGID, 6)
    k.v("v_mov_b32", V(1), S(74))
    for i in range(10):
        k.v("v_mov_b32", V(2), S(64 + i))
        k.buf_store(V(2), V(1), srd_tmp, 0, offset=4 * i)
    for i in range(2):
        k.v("v_mov_b32", V(2), S(80 + i))
        k.buf_store(V(2), V(1), srd_tmp, 0, offset=40 + 4 * i)


def gen_gemm(name, BM, BN, WM, WN, decode, nwg, relu_possible, NST=2, regA=False, fused2=False):
    g = G()
    NW = WM * WN
    assert NW == 4
    TM, TN = BM // WM, BN // WN
    NMB, NNB = TM // 16, TN // 16
    PA, PW = BK * 2, BN * 2
    A_BYTES, W_BYTES = BM * PA, BK * PW
    STAGE = A_BYTES + W_BYTES
    cntA, cntW = A_BYTES // 1024 // NW, W_BYTES // 1024 // NW
    srdA, srdW, srdC = S(4, 4), S(8, 4), S(12, 4)
    sA, sW, stepW, sLoop = S(16), S(17), S(18), S(19)
    sLda, sLdw, sLdc, sRelu = S(20), S(21), S(22), S(23)
    sWvA, sWvW = S(24), S(25)
    sA2 = S(48)
    srdX, srdGt, srdF, sFlag = S(52, 4), S(56, 4), S(60, 4), S(50)
    sT = [S(26 + i) for i in range(6)]
    sP = S(32, 16)
    tid = V(0)
    FS = (NNB + NMB) * 4
    Wf = [[V(4 + X * FS + nb * 4, 4) for nb in range(NNB)] for X in range(2)]
    Af = [[V(4 + X * FS + NNB * 4 + mb * 4, 4) for mb in range(NMB)] for X in range(2)]
    vb = 4 + 2 * FS
    voA = [V(vb + j) for j in range(cntA)]
    vb += cntA
    voW = [V(vb + j) for j in range(cntW)]
    vb += cntW
    adA = [[V(vb + st * 2 + ks) for ks in range(2)] for st in range(NST)]
    vb += 2 * NST
    adW = [[V(vb + st * NNB + nb) for nb in range(NNB)] for st in range(NST)]
    vb += NST * NNB
    tmp = [V(vb + i) for i in range(12)]
    vb += 12
    if regA:
        vb = (vb + 3) // 4 * 4
        stg = [V(vb + 4 * j, 4) for j in range(cntA)]
        vb += 4 * cntA
        adWr = [V(vb + st) for st in range(NST)]
        vb += NST
    if fused2:
        vb = (vb + 3) // 4 * 4
        epG = [V(vb + 4 * i, 4) for i in range(NMB * NNB // 2)]
        vb += 4 * (NMB * NNB // 2)
        epT = [V(vb + i) for i in range(16)]
        vb += 16
        epX = [V(vb + 4 * i, 4) for i in range(NMB * NNB // 2)]
        vb += 4 * (NMB * NNB // 2)
    nvgpr = vb
    acc = [[A((nb * NMB + mb) * 4, 4) for mb in range(NMB)] for nb in range(NNB)]
    nagpr = NNB * NMB * 4

    k = K()
    k.s("s_cmp_ge_u32", WGID, nwg)
    k.branch("s_cbranch_scc1", f"{name}_end")
    stamp(k, 0)
    decode(k, dict(srdA=srdA, srdW=srdW, srdC=srdC, sLda=sLda, sLdw=sLdw, sLdc=sLdc, sRelu=sRelu,
                   sLoop=sLoop, sT=sT, sP=sP, BM=BM, BN=BN, NST=NST,
                   srdX=srdX, srdGt=srdGt, srdF=srdF, sFlag=sFlag))
    stamp(k, 1, fine=True)
    lane, wv = tmp[0], tmp[1]
    k.v("v_and_b32", lane, 63, tid)
    k.v("v_lshrrev_b32", wv, 6, tid)
    k.v("v_readfirstlane_b32", sT[0], wv)
    k.s("s_mul_i32", sWvA, sT[0], cntA * 1024)
    k.s("s_mul_i32", sWvW, sT[0], cntW * 1024)
    k.s("s_mov_b32", sA, 0)
    k.s("s_mov_b32", sW, 0)
    k.s("s_lshl_b32", stepW, sLdw, 6)

    def dma_voffs(dst, P, cnt, is_w):
        RPI = 1024 // P
        cpr = P // 16
        lg = cpr.bit_length() - 1
        pc, rowb, row, t, t2 = tmp[2], tmp[3], tmp[4], tmp[5], tmp[6]
        outs = []
        for j in range(cnt):
            kb = K()
            if j == 0:
                kb.v("v_and_b32", pc, cpr - 1, lane)
                kb.v("v_lshrrev_b32", rowb, lg, lane)
                kb.v("v_mad_u32_u24", rowb, wv, cnt * RPI, rowb)
            kb.v("v_add_u32", row, j * RPI, rowb)
            if not is_w:
                kb.v("v_bfe_u32", t, row, 1, 3)
                kb.v("v_xor_b32", t, t, pc)
                kb.v("v_lshlrev_b32", t, 4, t)
                kb.v("v_mad_u32_u24", dst[j], row, sLda, t)
            else:
                kb.v("v_and_b32", t, 3, row)
                kb.v("v_bfe_u32", t2, row, 3, 1)
                kb.v("v_lshl_or_b32", t, t2, 2, t)
                kb.v("v_lshrrev_b32", t2, 1, pc)
                kb.v("v_xor_b32", t, t, t2)
                kb.v("v_lshlrev_b32", t, 5, t)
                kb.v("v_and_b32", t2, 1, pc)
                kb.v("v_lshl_or_b32", t, t2, 4, t)
                kb.v("v_mad_u32_u24", dst[j], row, sLdw, t)
            outs.append(kb.ins)
        return outs

    voff_calc = dma_voffs(voA, PA, cntA, False) + dma_voffs(voW, PW, cntW, True)

    def dma_group(kk, stage_par, withA=True):
        out = []
        if not withA:
            for j in range(cntA):
                kb = K()
                kb.ds_write("ds_write_b128", adWr[stage_par], stg[j], j * 1024)
                kb.buf_load(stg[j], voA[j], srdA, sA2)
                out.append(kb.ins)
        for j in range(cntA if withA else 0):
            kb = K()
            kb.s("s_add_u32", M0, sWvA, stage_par * STAGE + j * 1024)
            kb.buf_load_lds(voA[j], srdA, sA)
            out.append(kb.ins)
        for j in range(cntW):
            kb = K()
            kb.s("s_add_u32", M0, sWvW, stage_par * STAGE + A_BYTES + j * 1024)
            kb.buf_load_lds(voW[j], srdW, sW)
            out.append(kb.ins)
        return out

    def adv_k():
        kb = K()
        kb.s("s_add_u32", sA, sA, BK * 2)
        if regA:
            kb.s("s_add_u32", sA2, sA2, BK * 2)
        kb.s("s_add_u32", sW, sW, stepW)
        return kb.ins

    PRO_ST = min(NST, 2)
    for pr, calc in zip(dma_group(k, 0), voff_calc):
        k.add(pr[0])
        for i in calc:
            k.add(i)
        k.add(pr[1])
    for i in adv_k():
        k.add(i)
    main_k = k
    k = K()
    stamp(k, 2, fine=True)
    if regA:
        k.s("s_mov_b32", sA2, NST * BK * 2)
        for j in range(cntA):
            k.buf_load(stg[j], voA[j], srdA, sA2)
        k.s("s_add_u32", sA2, sA2, BK * 2)
        k.v("v_lshlrev_b32", tmp[2], 4, lane)
        k.v("v_lshl_add_u32", adWr[0], wv, (cntA * 1024).bit_length() - 1, tmp[2])
        for st in range(1, NST):
            k.v("v_add_u32", adWr[st], st * STAGE, adWr[0])
    wm, wn = tmp[2], tmp[3]
    k.v("v_lshrrev_b32", wm, (WN.bit_length() - 1), wv)
    k.v("v_and_b32", wn, WN - 1, wv)
    l15, lq, t, t2 = tmp[4], tmp[5], tmp[6], tmp[7]
    k.v("v_and_b32", l15, 15, lane)
    k.v("v_lshrrev_b32", lq, 4, lane)
    k.v("v_mul_u32_u24", t, TM, wm)
    k.v("v_add_u32", t, t, l15)
    k.v("v_lshlrev_b32", t, 7, t)
    k.v("v_lshrrev_b32", t2, 1, l15)
    k.v("v_xor_b32", t2, t2, lq)
    k.v("v_lshl_add_u32", adA[0][0], t2, 4, t)
    k.v("v_xor_b32", adA[0][1], 64, adA[0][0])
    for st in range(1, NST):
        for ks in range(2):
            k.v("v_add_u32", adA[st][ks], st * STAGE, adA[0][ks])
    gq, rr, cc, f = tmp[8], tmp[9], tmp[10], tmp[11]
    k.v("v_lshrrev_b32", gq, 4, lane)
    k.v("v_bfe_u32", rr, lane, 2, 2)
    k.v("v_and_b32", cc, 3, lane)
    k.v("v_and_b32", f, 1, gq)
    k.v("v_lshl_or_b32", f, f, 2, rr)
    k.v("v_lshl_add_u32", t, gq, 3, rr)
    k.v("v_mul_u32_u24", t, PW, t)
    k.v("v_lshl_add_u32", t, cc, 3, t)
    k.v("v_add_u32", t, A_BYTES, t)
    for nb in range(NNB):
        k.v("v_mul_u32_u24", t2, NNB, wn)
        k.v("v_add_u32", t2, nb, t2)
        k.v("v_xor_b32", t2, t2, f)
        k.v("v_lshl_add_u32", adW[0][nb], t2, 5, t)
        for st in range(1, NST):
            k.v("v_add_u32", adW[st][nb], st * STAGE, adW[0][nb])
    for nb in range(NNB):
        for mb in range(NMB):
            for r in range(4):
                k.v("v_accvgpr_write_b32", acc[nb][mb][r], 0)

    setup = k.ins
    k = main_k
    if PRO_ST > 1:
        grp = dma_group(k, 1)
        per = (len(setup) + len(grp) - 1) // len(grp)
        for gi, pr in enumerate(grp):
            k.add(pr[0])
            for i in setup[gi * per:(gi + 1) * per]:
                k.add(i)
            k.add(pr[1])
        for i in adv_k():
            k.add(i)
    else:
        for i in setup:
            k.add(i)

    def reads(X, st, ks):
        out = []
        seq = []
        for i in range(max(NMB, NNB)):
            if i < NNB:
                seq.append(("W", i))
            if i < NMB:
                seq.append(("A", i))
        for typ, i in seq:
            if typ == "A":
                kb = K()
                kb.ds_read("ds_read_b128", Af[X][i], adA[st][ks], i * 16 * PA)
                out += kb.ins
            else:
                for tt in range(2):
                    kb = K()
                    kb.ds_read("ds_read_b64_tr_b16", Wf[X][i].sub(2 * tt, 2), adW[st][i],
                               ks * 32 * PW + tt * 4 * PW)
                    out += kb.ins
        return out

    CPS = cntA + cntW
    k.waitcnt(vm=(PRO_ST - 1) * CPS)
    k.barrier()
    stamp(k, 1)
    stamp(k, 3, fine=True)
    for i in reads(0, 0, 0):
        k.add(i)
    pro = k.ins

    def substep(X, rd, dmas, extra):
        kb = K()
        mf = []
        for nb in range(NNB):
            for mb in range(NMB):
                mf.append((nb, mb))
        n = len(mf)
        slots = [[] for _ in range(n)]
        span = max(1, (n * 3) // 4)
        for i, r in enumerate(rd):
            slots[(i * span) // max(1, len(rd))].append(r)
        seq = [i for pr in dmas for i in pr]
        for i, ins_ in enumerate(seq):
            slots[1 + (i * (n - 1)) // max(1, len(seq))].append(ins_)
        for e in extra:
            slots[n - 1].append(e)
        for i, (nb, mb) in enumerate(mf):
            if "nomfma" not in DIAG:
                kb.mfma(MF, acc[nb][mb], Wf[X][nb], Af[X][mb])
            for s_ in slots[i]:
                if "nomfma" in DIAG and s_.kind == "ds":
                    continue
                kb.add(s_)
        return kb.ins

    def stage_code(par, do_dma, do_next_read, last, vmn=None, ramp=False):
        out = []
        rdm, rex = [], []
        if ramp:
            for st in range(PRO_ST, NST):
                rdm += dma_group(None, st)
                rdm.append((adv_k()[0], adv_k()[1]))
        out += substep(0, reads(1, par, 1), rdm, [])
        if not last:
            kb = K()
            kb.waitcnt(vm=((NST - 2) * CPS if vmn is None else vmn), lg=0)
            kb.barrier()
            out += kb.ins
        rd = reads(0, (par + 1) % NST, 0) if do_next_read else []
        dm = dma_group(None, par, withA=not regA) if (do_dma and "nodma" not in DIAG) else []
        ex = adv_k() if do_dma else []
        out += substep(1, rd, dm, ex)
        return out

    first = K()
    if NST > PRO_ST:
        for par in range(NST):
            for i in stage_code(par, True, True, False, ramp=(par == 0)):
                first.add(i)
    body = K()
    body.label(f"{name}_loop")
    for par in range(NST):
        for i in stage_code(par, True, True, False):
            body.add(i)
    body.s("s_sub_u32", sLoop, sLoop, 1)
    body.s("s_cmp_lg_u32", sLoop, 0)
    body.branch("s_cbranch_scc1", f"{name}_loop")

    tail = K()
    if fused2:
        kq = tail
        kq.s("s_cmp_lg_u32", sRelu, 0)
        kq.branch("s_cbranch_scc1", f"{name}_nopre")
        vCp = epT[15]
        kq.v("v_and_b32", epT[8], 15, tid)
        kq.v("v_lshrrev_b32", epT[9], 6, tid)
        kq.v("v_lshrrev_b32", epT[10], (WN.bit_length() - 1), epT[9])
        kq.v("v_and_b32", epT[11], WN - 1, epT[9])
        kq.v("v_mul_u32_u24", epT[12], TM, epT[10])
        kq.v("v_add_u32", epT[12], epT[12], epT[8])
        kq.v("v_mul_u32_u24", epT[13], TN * 2, epT[11])
        kq.v("v_mad_u32_u24", vCp, epT[12], sLdc, epT[13])
        kq.v("v_bfe_u32", epT[8], tid, 4, 2)
        kq.v("v_and_b32", epT[12], 1, epT[8])
        kq.v("v_lshlrev_b32", epT[12], 5, epT[12])
        kq.v("v_lshrrev_b32", epT[13], 1, epT[8])
        kq.v("v_lshl_or_b32", epT[12], epT[13], 4, epT[12])
        kq.v("v_add_u32", vCp, vCp, epT[12])
        kq.v("v_readfirstlane_b32", sT[3], epT[9])
        kq.s("s_cmp_lg_u32", sT[3], 0)
        kq.branch("s_cbranch_scc1", f"{name}_flag_ok")
        kq.v("v_mov_b32", epT[8], sFlag)
        kq.s("s_mov_b32", sT[4], 1 << 22)
        kq.label(f"{name}_poll")
        kq.buf_load(epT[9], epT[8], srdF, 0, flags="sc1")
        kq.waitcnt(vm=0)
        kq.v("v_readfirstlane_b32", sT[5], epT[9])
        kq.s("s_cmp_lg_u32", sT[5], 0)
        kq.branch("s_cbranch_scc1", f"{name}_flag_ok")
        kq.raw("s_sleep 4", "other")
        kq.s("s_sub_u32", sT[4], sT[4], 1)
        kq.s("s_cmp_lg_u32", sT[4], 0)
        kq.branch("s_cbranch_scc1", f"{name}_poll")
        kq.label(f"{name}_flag_ok", landing=True)
        kq.barrier()
        cnt_ = 0
        for mb in range(NMB):
            for p in range(NNB // 2):
                kq.s("s_mov_b32", sT[1], mb * 16 * 2048)
                kq.buf_load(epG[cnt_], vCp, srdGt, sT[1], offset=p * 64, flags="sc1")
                kq.buf_load(epX[cnt_], vCp, srdX, sT[1], offset=p * 64)
                cnt_ += 1
        kq.label(f"{name}_nopre")
    for par in range(NST):
        for i in stage_code(par, False, par < NST - 1, par == NST - 1, vmn=max(0, NST - 2 - par) * CPS):
            tail.add(i)

    k = tail
    stamp(k, 2)
    vC = tmp[0]
    k.v("v_and_b32", l15, 15, tid)
    k.v("v_lshrrev_b32", wv, 6, tid)
    k.v("v_lshrrev_b32", wm, (WN.bit_length() - 1), wv)
    k.v("v_and_b32", wn, WN - 1, wv)
    k.v("v_mul_u32_u24", t, TM, wm)
    k.v("v_add_u32", t, t, l15)
    k.v("v_mul_u32_u24", t2, TN * 2, wn)
    k.v("v_mad_u32_u24", vC, t, sLdc, t2)
    k.v("v_bfe_u32", lq, tid, 4, 2)
    k.v("v_and_b32", t, 1, lq)
    k.v("v_lshlrev_b32", t, 5, t)
    k.v("v_lshrrev_b32", t2, 1, lq)
    k.v("v_lshl_or_b32", t, t2, 4, t)
    k.v("v_add_u32", vC, vC, t)
    sRow = sT[1]
    NSET = 4

    def epi(relu):
        cnt = 0
        for mb in range(NMB):
            if mb == 0:
                k.s("s_mov_b32", sRow, 0)
            else:
                k.s("s_lshl_b32", sT[2], sLdc, 4)
                k.s("s_add_u32", sRow, sRow, sT[2])
            for p in range(NNB // 2):
                base = 4 + (cnt % NSET) * 12
                cnt += 1
                tt = V(base, 8)
                T = V(base + 8, 4)
                for u in range(2):
                    for r in range(4):
                        k.v("v_accvgpr_read_b32", tt[u * 4 + r], acc[2 * p + u][mb][r])
                for q in range(4):
                    k.v("v_cvt_pk_bf16_f32", T[q], tt[2 * q], tt[2 * q + 1])
                k.v("v_permlane16_swap_b32", T[0], T[2])
                k.v("v_permlane16_swap_b32", T[1], T[3])
                if relu:
                    for q in range(4):
                        k.v("v_pk_max_i16", T[q], T[q], 0)
                k.buf_store(T, vC, srdC, sRow, offset=p * 64)

    MASK = 0xFFFF0000

    def groups():
        cnt = 0
        for mb in range(NMB):
            for p in range(NNB // 2):
                yield cnt, mb, p
                cnt += 1

    def row_off(mb):
        return mb * 16 * 2048

    def epi_silu_pub():
        for cnt, mb, p in groups():
            base = 4 + (cnt % NSET) * 12
            tt, T = V(base, 8), V(base + 8, 4)
            for u in range(2):
                for r in range(4):
                    k.v("v_accvgpr_read_b32", tt[u * 4 + r], acc[2 * p + u][mb][r])
            for q in range(4):
                k.v("v_cvt_pk_bf16_f32", T[q], tt[2 * q], tt[2 * q + 1])
            for q in range(4):
                z0, z1, e0, e1 = tt[0], tt[1], tt[2], tt[3]
                if q & 1:
                    z0, z1, e0, e1 = tt[4], tt[5], tt[6], tt[7]
                k.v("v_lshlrev_b32", z0, 16, T[q])
                k.v("v_and_b32", z1, MASK, T[q])
                k.v("v_mul_f32", e0, -1.4426950408889634, z0)
                k.v("v_mul_f32", e1, -1.4426950408889634, z1)
                k.v("v_exp_f32", e0, e0)
                k.v("v_exp_f32", e1, e1)
                k.v("v_add_f32", e0, 1.0, e0)
                k.v("v_add_f32", e1, 1.0, e1)
                k.v("v_rcp_f32", e0, e0)
                k.v("v_rcp_f32", e1, e1)
                k.v("v_mul_f32", z0, z0, e0)
                k.v("v_mul_f32", z1, z1, e1)
                k.v("v_cvt_pk_bf16_f32", T[q], z0, z1)
            k.v("v_permlane16_swap_b32", T[0], T[2])
            k.v("v_permlane16_swap_b32", T[1], T[3])
            k.buf_store(T, vC, srdC, 0, offset=p * 64 + 0, flags="sc1") if mb == 0 else None
            if mb:
                k.s("s_mov_b32", sRow, row_off(mb))
                k.buf_store(T, vC, srdC, sRow, offset=p * 64, flags="sc1")
        k.waitcnt(vm=0)
        k.barrier()
        k.v("v_lshrrev_b32", tmp[1], 6, tid)
        k.v("v_readfirstlane_b32", sT[3], tmp[1])
        k.s("s_cmp_lg_u32", sT[3], 0)
        k.branch("s_cbranch_scc1", f"{name}_end")
        k.v("v_mov_b32", tmp[2], sFlag)
        k.v("v_mov_b32", tmp[3], 1)
        k.buf_store(tmp[3], tmp[2], srdF, 0, flags="sc1")

    def epi_combine():
        Spk = [V(4 + 4 * i, 4) for i in range(NMB * NNB // 2)]
        Xr = epX
        for cnt, mb, p in groups():
            tt = V(epT[0].idx, 8)
            T = Spk[cnt]
            for u in range(2):
                for r in range(4):
                    k.v("v_accvgpr_read_b32", tt[u * 4 + r], acc[2 * p + u][mb][r])
            for q in range(4):
                k.v("v_cvt_pk_bf16_f32", T[q], tt[2 * q], tt[2 * q + 1])
            k.v("v_permlane16_swap_b32", T[0], T[2])
            k.v("v_permlane16_swap_b32", T[1], T[3])
        for cnt, mb, p in groups():
            T, Gq, Xq = Spk[cnt], epG[cnt], Xr[cnt]
            for q in range(4):
                s0, s1, g0, g1, x0, x1, pp = (epT[(q & 1) * 8 + i] for i in range(7))
                k.v("v_lshlrev_b32", s0, 16, T[q])
                k.v("v_and_b32", s1, MASK, T[q])
                k.v("v_lshlrev_b32", g0, 16, Gq[q])
                k.v("v_and_b32", g1, MASK, Gq[q])
                k.v("v_mul_f32", s0, s0, g0)
                k.v("v_mul_f32", s1, s1, g1)
                k.v("v_cvt_pk_bf16_f32", pp, s0, s1)
                k.v("v_lshlrev_b32", s0, 16, pp)
                k.v("v_and_b32", s1, MASK, pp)
                k.v("v_lshlrev_b32", x0, 16, Xq[q])
                k.v("v_and_b32", x1, MASK, Xq[q])
                k.v("v_add_f32", x0, x0, s0)
                k.v("v_add_f32", x1, x1, s1)
                k.v("v_cvt_pk_bf16_f32", T[q], x0, x1)
            k.s("s_mov_b32", sRow, row_off(mb))
            k.buf_store(T, vC, srdC, sRow, offset=p * 64)

    if fused2:
        k.s("s_cmp_eq_u32", sRelu, 0)
        k.branch("s_cbranch_scc1", f"{name}_epi_plain")
        epi_silu_pub()
        k.branch("s_branch", f"{name}_end")
        k.label(f"{name}_epi_plain", landing=True)
        epi_combine()
    else:
        if relu_possible:
            k.s("s_cmp_eq_u32", sRelu, 0)
            k.branch("s_cbranch_scc1", f"{name}_epi_plain")
            epi(True)
            if "stamps" in DIAG:
                k.waitcnt(vm=0)
                stamp(k, 3)
                stamp_store(k, name, S(76, 4), sP.sub(0, 2))
            k.branch("s_branch", f"{name}_end")
            k.label(f"{name}_epi_plain", landing=True)
        epi(False)
        if "stamps" in DIAG:
            k.waitcnt(vm=0)
            stamp(k, 3)
            stamp_store(k, name, S(76, 4), sP.sub(0, 2))
    k.label(f"{name}_end")
    k.endpgm()

    segs = [Seg(pro + first.ins), Seg(body.ins, loop=True), Seg(tail.ins)]
    return dict(name=name, segs=segs, vgpr=max(nvgpr, 8), agpr=nagpr, sgpr=(96 if "stamps" in DIAG else 64), lds=NST * STAGE)


def csel(k, dst, idx, a, b):
    if isinstance(b, int) and isinstance(a, int):
        k.s("s_mov_b32", dst, b)
        b = dst
    k.s("s_cmp_lt_u32", idx, 16)
    k.s("s_cselect_b32", dst, a, b)


def gen_gemm1():
    name = "gemm1_kernel"
    NWG = 240

    def decode(k, R):
        sT, sP = R["sT"], R["sP"]
        pws, pwq, pw1 = sP.sub(0, 2), sP.sub(2, 2), sP.sub(4, 2)
        k.s_load(pws, KARG, KA_WS * 8)
        k.s_load(pwq, KARG, KA_WQ * 8)
        k.s_load(pw1, KARG, KA_W1 * 8)
        xcd, idx, m, n, u = sT[0], sT[1], sT[2], sT[3], sT[4]
        k.s("s_and_b32", xcd, WGID, 7)
        k.s("s_lshr_b32", idx, WGID, 3)
        k.s("s_mul_i32", u, xcd, 14)
        k.s("s_add_u32", u, u, idx)
        k.s("s_sub_u32", u, u, 16)
        k.s("s_lshl_b32", n, xcd, 1)
        k.s("s_lshr_b32", sT[5], idx, 3)
        k.s("s_add_u32", n, n, sT[5])
        csel(k, m, idx, idx, u)
        k.s("s_and_b32", m, m, 7)
        k.s("s_lshr_b32", u, u, 3)
        csel(k, n, idx, n, u)
        pW = sP.sub(6, 2)
        csel(k, pW[0], idx, pwq[0], pw1[0])
        csel(k, pW[1], idx, pwq[1], pw1[1])
        csel(k, R["sLdw"], idx, 8192, 7168)
        csel(k, R["sLdc"], idx, LD_Q, LD_H)
        k.s("s_mov_b32", R["sLda"], 2048)
        csel(k, R["sRelu"], idx, 0, 1)
        cofs, csz, wsz = sP[8], sP[9], sP[10]
        csel(k, cofs, idx, WS_Q, WS_H)
        csel(k, csz, idx, SZ_Q, SZ_H)
        csel(k, wsz, idx, SZ_WQ, SZ_W1)
        k.s("s_mov_b32", R["sLoop"], 1024 // BK // R["NST"] - (2 if R["NST"] > 2 else 1))
        o1, o2 = sP[11], sP[12]
        k.s("s_lshl_b32", o1, m, 19)
        k.s("s_add_u32", o2, o1, WS_XN)
        mk_srd(k, R["srdA"], pws, o2, 0)
        k.s("s_sub_u32", R["srdA"][2], SZ_XN, o1)
        k.s("s_lshl_b32", o1, n, 9)
        mk_srd(k, R["srdW"], pW, o1, 0)
        k.s("s_sub_u32", R["srdW"][2], wsz, o1)
        k.s("s_lshl_b32", o2, m, 8)
        k.s("s_mul_i32", o2, o2, R["sLdc"])
        k.s("s_add_u32", o1, o1, o2)
        k.s("s_add_u32", o2, o1, cofs)
        mk_srd(k, R["srdC"], pws, o2, 0)
        k.s("s_sub_u32", R["srdC"][2], csz, o1)

    kd = gen_gemm(name, 256, 256, 2, 2, decode, NWG, True)
    kd.update(grid=(NWG, 1, 1), block=(256, 1, 1))
    return kd


def gen_gemm2():
    name = "gemm2_kernel"
    NWG = 256

    def decode(k, R):
        sT, sP = R["sT"], R["sP"]
        pws, pwo, pw2 = sP.sub(0, 2), sP.sub(2, 2), sP.sub(4, 2)
        k.s_load(pws, KARG, KA_WS * 8)
        k.s_load(pwo, KARG, KA_WO * 8)
        k.s_load(pw2, KARG, KA_W2 * 8)
        k.s_load(R["srdC"].sub(0, 2), KARG, KA_OUT * 8)
        k.s_load(R["srdX"].sub(0, 2), KARG, KA_X * 8)
        xcd, idx, m, n = sT[0], sT[1], sT[2], sT[3]
        k.s("s_and_b32", xcd, WGID, 7)
        k.s("s_lshr_b32", idx, WGID, 3)
        k.s("s_bfe_u32", m, xcd, (1 << 16) | 1)
        k.s("s_lshl_b32", m, m, 3)
        k.s("s_and_b32", sT[4], idx, 7)
        k.s("s_add_u32", m, m, sT[4])
        k.s("s_and_b32", n, xcd, 1)
        k.s("s_lshl_b32", n, n, 2)
        k.s("s_lshr_b32", sT[4], idx, 3)
        k.s("s_add_u32", n, n, sT[4])
        k.s("s_lshr_b32", idx, xcd, 2)
        k.s("s_lshl_b32", idx, idx, 4)
        pW = sP.sub(6, 2)
        csel(k, pW[0], idx, pwo[0], pw2[0])
        csel(k, pW[1], idx, pwo[1], pw2[1])
        k.s("s_mov_b32", R["sLdw"], 2048)
        k.s("s_mov_b32", R["sLdc"], 2048)
        csel(k, R["sLda"], idx, LD_O, LD_H)
        csel(k, R["sRelu"], idx, 0, 1)
        aofs, asz, wsz, cofs = sP[8], sP[9], sP[10], sP[13]
        csel(k, aofs, idx, WS_O, WS_H)
        csel(k, asz, idx, SZ_O, SZ_H)
        csel(k, wsz, idx, SZ_WO, SZ_W2)
        csel(k, R["sLoop"], idx, 4096 // BK // R["NST"] - (2 if R["NST"] > 2 else 1), 3584 // BK // R["NST"] - (2 if R["NST"] > 2 else 1))
        o1, o2 = sP[11], sP[12]
        k.s("s_lshl_b32", o1, m, 7)
        k.s("s_mul_i32", o1, o1, R["sLda"])
        if "sametile" in DIAG:
            k.s("s_mov_b32", o1, 0)
        k.s("s_add_u32", o2, o1, aofs)
        mk_srd(k, R["srdA"], pws, o2, 0)
        k.s("s_sub_u32", R["srdA"][2], asz, o1)
        k.s("s_lshl_b32", o1, n, 8)
        if "sametile" in DIAG:
            k.s("s_mov_b32", o1, 0)
        mk_srd(k, R["srdW"], pW, o1, 0)
        k.s("s_sub_u32", R["srdW"][2], wsz, o1)
        k.s("s_lshl_b32", o1, n, 8)
        k.s("s_lshl_b32", o2, m, 18)
        k.s("s_add_u32", o1, o1, o2)
        csel(k, R["srdC"][0], idx, R["srdC"][0], pws[0])
        csel(k, R["srdC"][1], idx, R["srdC"][1], pws[1])
        csel(k, cofs, idx, 0, WS_G)
        k.s("s_add_u32", o2, o1, cofs)
        mk_srd(k, R["srdC"], R["srdC"].sub(0, 2), o2, 0)
        k.s("s_sub_u32", R["srdC"][2], SZ_OUT, o1)
        mk_srd(k, R["srdX"], R["srdX"].sub(0, 2), o1, 0)
        k.s("s_sub_u32", R["srdX"][2], SZ_X, o1)
        k.s("s_add_u32", o2, o1, WS_G)
        mk_srd(k, R["srdGt"], pws, o2, 0)
        k.s("s_sub_u32", R["srdGt"][2], SZ_G, o1)
        mk_srd(k, R["srdF"], pws, WS_FLAGS, 512)
        k.s("s_lshl_b32", R["sFlag"], m, 3)
        k.s("s_add_u32", R["sFlag"], R["sFlag"], n)
        k.s("s_lshl_b32", R["sFlag"], R["sFlag"], 2)

    kd = gen_gemm(name, 128, 128, 2, 2, decode, NWG, False, NST=4, regA=False, fused2=True)
    kd.update(grid=(NWG, 1, 1), block=(256, 1, 1))
    return kd
```

```python
from common import *


def ln_row(k, voff, srdx, srdo, sA_, sB_, flags=""):
    raw = V(4, 8)
    k.buf_load(raw.sub(0, 4), voff, srdx)
    k.buf_load(raw.sub(4, 4), voff, srdx, offset=16)
    xf = V(12, 16)
    for i in range(8):
        k.v("v_lshlrev_b32", xf[2 * i], 16, raw[i])
        k.v("v_and_b32", xf[2 * i + 1], 0xFFFF0000, raw[i])
    acc, tmp, mean, mbf = V(28), V(29), V(30), V(31)
    t = V(32, 8)
    for i in range(8):
        k.v("v_add_f32", t[i], xf[2 * i], xf[2 * i + 1])
    for i in range(4):
        k.v("v_add_f32", t[i], t[i], t[i + 4])
    k.v("v_add_f32", t[0], t[0], t[2])
    k.v("v_add_f32", t[1], t[1], t[3])
    k.v("v_add_f32", acc, t[0], t[1])
    wave_sum(k, acc, tmp, sA_, sB_)
    k.v("v_mul_f32", mean, 1.0 / 1024, acc)
    d = V(40, 16)
    for i in range(16):
        k.v("v_sub_f32", d[i], xf[i], mean)
    for i in range(8):
        k.v("v_mul_f32", t[i], d[2 * i], d[2 * i])
        k.v("v_fmac_f32", t[i], d[2 * i + 1], d[2 * i + 1])
    for i in range(4):
        k.v("v_add_f32", t[i], t[i], t[i + 4])
    k.v("v_add_f32", t[0], t[0], t[2])
    k.v("v_add_f32", t[1], t[1], t[3])
    k.v("v_add_f32", acc, t[0], t[1])
    wave_sum(k, acc, tmp, sA_, sB_)
    var = V(56)
    k.v("v_mul_f32", var, 1.0 / 1024, acc)
    k.v("v_mov_b32", mbf, mean)
    bf16_round_scalar(k, mbf, tmp)
    bf16_round_scalar(k, var, tmp)
    k.v("v_add_f32", var, 1e-5, var)
    bf16_round_scalar(k, var, tmp)
    k.v("v_sqrt_f32", var, var)
    bf16_round_scalar(k, var, tmp)
    r = var
    rinv = V(57)
    k.v("v_rcp_f32", rinv, r)
    outp = V(60, 8)
    for i in range(8):
        a, b = d[2 * i], d[2 * i + 1]
        k.v("v_sub_f32", a, xf[2 * i], mbf)
        k.v("v_sub_f32", b, xf[2 * i + 1], mbf)
        k.v("v_cvt_pk_bf16_f32", tmp, a, b)
        k.v("v_lshlrev_b32", a, 16, tmp)
        k.v("v_and_b32", b, 0xFFFF0000, tmp)
        q0a, q0b, ea, eb = t[0], t[1], t[2], t[3]
        k.v("v_mul_f32", q0a, a, rinv)
        k.v("v_mul_f32", q0b, b, rinv)
        k.v("v_fma_f32", ea, Neg(q0a), r, a)
        k.v("v_fma_f32", eb, Neg(q0b), r, b)
        k.v("v_fma_f32", q0a, ea, rinv, q0a)
        k.v("v_fma_f32", q0b, eb, rinv, q0b)
        k.v("v_cvt_pk_bf16_f32", outp[i], q0a, q0b)
    k.buf_store(outp.sub(0, 4), voff, srdo, flags=flags)
    k.buf_store(outp.sub(4, 4), voff, srdo, offset=16, flags=flags)


def gen_ln():
    k = K()
    name = "ln_kernel"
    NWG = 512
    k.s("s_cmp_ge_u32", WGID, NWG)
    k.branch("s_cbranch_scc1", f"{name}_end")
    px, pws = S(4, 2), S(6, 2)
    k.s_load(px, KARG, KA_X * 8)
    k.s_load(pws, KARG, KA_WS * 8)
    srdx, srdo = S(8, 4), S(12, 4)
    tid, voff = V(0), V(1)
    k.v("v_lshrrev_b32", V(2), 6, tid)
    k.s("s_lshl_b32", S(16), WGID, 2)
    k.v("v_add_u32", V(2), S(16), V(2))
    k.v("v_lshlrev_b32", V(2), 11, V(2))
    k.v("v_and_b32", V(3), 63, tid)
    k.v("v_lshlrev_b32", V(3), 5, V(3))
    k.v("v_add_u32", voff, V(2), V(3))
    mk_srd(k, srdx, px, 0, SZ_X)
    mk_srd(k, srdo, pws, WS_XN, SZ_XN)
    ln_row(k, voff, srdx, srdo, S(18), S(19))
    k.label(f"{name}_end")
    k.endpgm()
    return dict(name=name, segs=[Seg(k.ins)], vgpr=72, sgpr=24, grid=(NWG, 1, 1), block=(256, 1, 1), lds=0)


class Neg(Reg):
    def __init__(self, r):
        super().__init__(r.kind, r.idx, r.n)

    def __str__(self):
        return "-" + super().__str__()


def gen_combine(name):
    k = K()
    NWG = 1024
    k.s("s_cmp_ge_u32", WGID, NWG)
    k.branch("s_cbranch_scc1", f"{name}_end")
    px, pws, pout = S(4, 2), S(6, 2), S(20, 2)
    k.s_load(px, KARG, KA_X * 8)
    k.s_load(pws, KARG, KA_WS * 8)
    k.s_load(pout, KARG, KA_OUT * 8)
    tid, voff = V(0), V(1)
    k.s("s_lshl_b32", S(24), WGID, 12)
    k.v("v_lshlrev_b32", voff, 4, tid)
    k.v("v_add_u32", voff, S(24), voff)
    srdx, srds, srdg, srdo = S(8, 4), S(12, 4), S(16, 4), S(28, 4)
    mk_srd(k, srdx, px, 0, SZ_X)
    mk_srd(k, srds, pws, WS_S, SZ_S)
    mk_srd(k, srdg, pws, WS_G, SZ_G)
    mk_srd(k, srdo, pout, 0, SZ_OUT)
    rx, rs, rg = V(4, 4), V(8, 4), V(12, 4)
    k.buf_load(rg, voff, srdg)
    k.buf_load(rs, voff, srds)
    k.buf_load(rx, voff, srdx)
    outp = V(16, 4)
    MASK = 0xFFFF0000
    for i in range(4):
        b = 20 + 12 * i
        z0, z1, e0, e1, t, s0, s1, x0, x1 = (V(b + j) for j in range(9))
        k.v("v_lshlrev_b32", z0, 16, rg[i])
        k.v("v_and_b32", z1, MASK, rg[i])
        k.v("v_mul_f32", e0, -1.4426950408889634, z0)
        k.v("v_mul_f32", e1, -1.4426950408889634, z1)
        k.v("v_exp_f32", e0, e0)
        k.v("v_exp_f32", e1, e1)
        k.v("v_add_f32", e0, 1.0, e0)
        k.v("v_add_f32", e1, 1.0, e1)
        k.v("v_rcp_f32", e0, e0)
        k.v("v_rcp_f32", e1, e1)
        k.v("v_mul_f32", z0, z0, e0)
        k.v("v_mul_f32", z1, z1, e1)
        k.v("v_cvt_pk_bf16_f32", t, z0, z1)
        k.v("v_lshlrev_b32", z0, 16, t)
        k.v("v_and_b32", z1, MASK, t)
        k.v("v_lshlrev_b32", s0, 16, rs[i])
        k.v("v_and_b32", s1, MASK, rs[i])
        k.v("v_mul_f32", s0, s0, z0)
        k.v("v_mul_f32", s1, s1, z1)
        k.v("v_cvt_pk_bf16_f32", t, s0, s1)
        k.v("v_lshlrev_b32", s0, 16, t)
        k.v("v_and_b32", s1, MASK, t)
        k.v("v_lshlrev_b32", x0, 16, rx[i])
        k.v("v_and_b32", x1, MASK, rx[i])
        k.v("v_add_f32", x0, x0, s0)
        k.v("v_add_f32", x1, x1, s1)
        k.v("v_cvt_pk_bf16_f32", outp[i], x0, x1)
    k.buf_store(outp, voff, srdo)
    k.label(f"{name}_end")
    k.endpgm()
    return dict(name=name, segs=[Seg(k.ins)], vgpr=72, sgpr=32, grid=(NWG, 1, 1), block=(256, 1, 1), lds=0)
```

```python
from common import *
from k_elem import ln_row

MF = "v_mfma_f32_16x16x32_bf16"
BK = 64


class G:
    pass


import os
DIAG = os.environ.get("GEMM_DIAG", "")


def stamp(k, i, fine=False):
    if "stamps2" in DIAG and not fine and i > 0:
        return
    if fine and "stamps2" not in DIAG:
        return
    if "stamps" in DIAG:
        k.raw(f"s_memtime s[{64 + 2 * i}:{65 + 2 * i}]", "smem", wr=[S(64 + 2 * i, 2)])
        if i == 0:
            k.raw("s_memrealtime s[80:81]", "smem", wr=[S(80, 2)])
        k.waitcnt(lg=0)


def stamp_store(k, name, srd_tmp, pws):
    if "stamps" not in DIAG:
        return
    k.raw("s_memrealtime s[72:73]", "smem", wr=[S(72, 2)])
    k.waitcnt(lg=0)
    mk_srd(k, srd_tmp, pws, (200 if name.startswith("gemm1") else (202 if name.startswith("attn") else 201)) * MiB, 1 << 20)
    k.v("v_lshlrev_b32", V(1), 6, 0) if False else None
    k.s("s_lshl_b32", S(74), WGID, 6)
    k.v("v_mov_b32", V(1), S(74))
    for i in range(10):
        k.v("v_mov_b32", V(2), S(64 + i))
        k.buf_store(V(2), V(1), srd_tmp, 0, offset=4 * i)
    for i in range(2):
        k.v("v_mov_b32", V(2), S(80 + i))
        k.buf_store(V(2), V(1), srd_tmp, 0, offset=40 + 4 * i)


def gen_gemm(name, BM, BN, WM, WN, decode, nwg, relu_possible, NST=2, regA=False, fused2=False, ln_pre=False):
    g = G()
    NW = WM * WN
    assert NW == 4
    TM, TN = BM // WM, BN // WN
    NMB, NNB = TM // 16, TN // 16
    PA, PW = BK * 2, BN * 2
    A_BYTES, W_BYTES = BM * PA, BK * PW
    STAGE = A_BYTES + W_BYTES
    cntA, cntW = A_BYTES // 1024 // NW, W_BYTES // 1024 // NW
    srdA, srdW, srdC = S(4, 4), S(8, 4), S(12, 4)
    sA, sW, stepW, sLoop = S(16), S(17), S(18), S(19)
    sLda, sLdw, sLdc, sRelu = S(20), S(21), S(22), S(23)
    sWvA, sWvW = S(24), S(25)
    sA2 = S(48)
    srdX, srdGt, srdF, sFlag = S(52, 4), S(56, 4), S(60, 4), S(50)
    sT = [S(26 + i) for i in range(6)]
    sP = S(32, 16)
    tid = V(0)
    FS = (NNB + NMB) * 4
    Wf = [[V(4 + X * FS + nb * 4, 4) for nb in range(NNB)] for X in range(2)]
    Af = [[V(4 + X * FS + NNB * 4 + mb * 4, 4) for mb in range(NMB)] for X in range(2)]
    vb = 4 + 2 * FS
    voA = [V(vb + j) for j in range(cntA)]
    vb += cntA
    voW = [V(vb + j) for j in range(cntW)]
    vb += cntW
    adA = [[V(vb + st * 2 + ks) for ks in range(2)] for st in range(NST)]
    vb += 2 * NST
    adW = [[V(vb + st * NNB + nb) for nb in range(NNB)] for st in range(NST)]
    vb += NST * NNB
    tmp = [V(vb + i) for i in range(12)]
    vb += 12
    if regA:
        vb = (vb + 3) // 4 * 4
        stg = [V(vb + 4 * j, 4) for j in range(cntA)]
        vb += 4 * cntA
        adWr = [V(vb + st) for st in range(NST)]
        vb += NST
    if fused2:
        vb = (vb + 3) // 4 * 4
        epG = [V(vb + 4 * i, 4) for i in range(NMB * NNB // 2)]
        vb += 4 * (NMB * NNB // 2)
        epT = [V(vb + i) for i in range(16)]
        vb += 16
        epX = [V(vb + 4 * i, 4) for i in range(NMB * NNB // 2)]
        vb += 4 * (NMB * NNB // 2)
    nvgpr = vb
    acc = [[A((nb * NMB + mb) * 4, 4) for mb in range(NMB)] for nb in range(NNB)]
    nagpr = NNB * NMB * 4

    k = K()
    k.s("s_cmp_ge_u32", WGID, nwg)
    k.branch("s_cbranch_scc1", f"{name}_end")
    stamp(k, 0)
    decode(k, dict(srdA=srdA, srdW=srdW, srdC=srdC, sLda=sLda, sLdw=sLdw, sLdc=sLdc, sRelu=sRelu,
                   sLoop=sLoop, sT=sT, sP=sP, BM=BM, BN=BN, NST=NST,
                   srdX=srdX, srdGt=srdGt, srdF=srdF, sFlag=sFlag))
    if ln_pre:
        srdLx, srdLo, srdD = S(52, 4), S(56, 4), S(60, 4)
        sWave, sR0, sC0, sC1 = S(48), S(49), S(50), S(51)
        k.s_load(srdLx.sub(0, 2), KARG, KA_X * 8)
        k.s_load(srdD.sub(0, 2), KARG, KA_DBG * 8)
        mk_srd(k, srdLx, srdLx.sub(0, 2), 0, SZ_X)
        mk_srd(k, srdD, srdD.sub(0, 2), 0, 256)
        mk_srd(k, srdLo, sP.sub(0, 2), WS_XN, SZ_XN)
        vLn = V(1)
        k.v("v_and_b32", vLn, 63, tid)
        k.v("v_lshrrev_b32", V(2), 6, tid)
        k.v("v_readfirstlane_b32", sWave, V(2))
        k.s("s_mul_i32", sR0, WGID, 9)
        for i in range(3):
            k.s("s_add_u32", sC0, sWave, 4 * i)
            k.s("s_cmp_ge_u32", sC0, 9)
            k.branch("s_cbranch_scc1", f"{name}_lnskip{i}")
            k.s("s_add_u32", sC0, sC0, sR0)
            k.s("s_cmp_ge_u32", sC0, 2048)
            k.branch("s_cbranch_scc1", f"{name}_lnskip{i}")
            k.s("s_lshl_b32", sC0, sC0, 11)
            k.v("v_lshlrev_b32", V(3), 5, vLn)
            k.v("v_add_u32", V(3), sC0, V(3))
            ln_row(k, V(3), srdLx, srdLo, sC0, sC1, flags="sc1")
            k.label(f"{name}_lnskip{i}", landing=True)
        k.waitcnt(vm=0)
        k.barrier()
        k.s("s_cmp_lg_u32", sWave, 0)
        k.branch("s_cbranch_scc1", f"{name}_ln_ok")
        k.s("s_mov_b32", sC1, 2048)
        k.s("s_sub_u32", sC1, sC1, sR0)
        k.s("s_max_i32", sC1, sC1, 0)
        k.s("s_min_u32", sC1, sC1, 9)
        k.s("s_and_b32", sC0, sR0, 255)
        k.s("s_sub_u32", sC0, 256, sC0)
        k.s("s_min_u32", sC0, sC0, sC1)
        k.s("s_sub_u32", sC1, sC1, sC0)
        k.s("s_mov_b64", EXEC, 1)
        k.s("s_lshr_b32", sR0, sR0, 8)
        k.s("s_lshl_b32", sR0, sR0, 2)
        k.v("v_mov_b32", V(4), sR0)
        k.v("v_mov_b32", V(5), sC0)
        k.v("v_mov_b32", V(6), sC1)
        k.add(Instr(f"buffer_atomic_add {V(5)}, {V(4)}, {srdD}, 0 offen sc1", "vmem", [], [V(5), V(4), srdD]))
        k.add(Instr(f"buffer_atomic_add {V(6)}, {V(4)}, {srdD}, 0 offen offset:4 sc1", "vmem", [],
                    [V(6), V(4), srdD]))
        k.s("s_lshl_b32", sC0, sT[2], 2)
        k.v("v_mov_b32", V(4), sC0)
        k.s("s_mov_b32", sC1, 1 << 22)
        k.label(f"{name}_lnpoll")
        k.buf_load(V(5), V(4), srdD, 0, flags="sc1")
        k.waitcnt(vm=0)
        k.v("v_readfirstlane_b32", sC0, V(5))
        k.s("s_cmp_ge_u32", sC0, 256)
        k.branch("s_cbranch_scc1", f"{name}_ln_done")
        k.raw("s_sleep 2", "other")
        k.s("s_sub_u32", sC1, sC1, 1)
        k.s("s_cmp_lg_u32", sC1, 0)
        k.branch("s_cbranch_scc1", f"{name}_lnpoll")
        k.label(f"{name}_ln_done", landing=True)
        k.s("s_mov_b64", EXEC, -1)
        k.label(f"{name}_ln_ok", landing=True)
        k.barrier()
    stamp(k, 1, fine=True)
    lane, wv = tmp[0], tmp[1]
    k.v("v_and_b32", lane, 63, tid)
    k.v("v_lshrrev_b32", wv, 6, tid)
    k.v("v_readfirstlane_b32", sT[0], wv)
    k.s("s_mul_i32", sWvA, sT[0], cntA * 1024)
    k.s("s_mul_i32", sWvW, sT[0], cntW * 1024)
    k.s("s_mov_b32", sA, 0)
    k.s("s_mov_b32", sW, 0)
    k.s("s_lshl_b32", stepW, sLdw, 6)

    def dma_voffs(dst, P, cnt, is_w):
        RPI = 1024 // P
        cpr = P // 16
        lg = cpr.bit_length() - 1
        pc, rowb, row, t, t2 = tmp[2], tmp[3], tmp[4], tmp[5], tmp[6]
        outs = []
        for j in range(cnt):
            kb = K()
            if j == 0:
                kb.v("v_and_b32", pc, cpr - 1, lane)
                kb.v("v_lshrrev_b32", rowb, lg, lane)
                kb.v("v_mad_u32_u24", rowb, wv, cnt * RPI, rowb)
            kb.v("v_add_u32", row, j * RPI, rowb)
            if not is_w:
                kb.v("v_bfe_u32", t, row, 1, 3)
                kb.v("v_xor_b32", t, t, pc)
                kb.v("v_lshlrev_b32", t, 4, t)
                kb.v("v_mad_u32_u24", dst[j], row, sLda, t)
            else:
                kb.v("v_and_b32", t, 3, row)
                kb.v("v_bfe_u32", t2, row, 3, 1)
                kb.v("v_lshl_or_b32", t, t2, 2, t)
                kb.v("v_lshrrev_b32", t2, 1, pc)
                kb.v("v_xor_b32", t, t, t2)
                kb.v("v_lshlrev_b32", t, 5, t)
                kb.v("v_and_b32", t2, 1, pc)
                kb.v("v_lshl_or_b32", t, t2, 4, t)
                kb.v("v_mad_u32_u24", dst[j], row, sLdw, t)
            outs.append(kb.ins)
        return outs

    voff_calc = dma_voffs(voA, PA, cntA, False) + dma_voffs(voW, PW, cntW, True)

    def dma_group(kk, stage_par, withA=True):
        out = []
        if not withA:
            for j in range(cntA):
                kb = K()
                kb.ds_write("ds_write_b128", adWr[stage_par], stg[j], j * 1024)
                kb.buf_load(stg[j], voA[j], srdA, sA2)
                out.append(kb.ins)
        for j in range(cntA if withA else 0):
            kb = K()
            kb.s("s_add_u32", M0, sWvA, stage_par * STAGE + j * 1024)
            kb.buf_load_lds(voA[j], srdA, sA)
            out.append(kb.ins)
        for j in range(cntW):
            kb = K()
            kb.s("s_add_u32", M0, sWvW, stage_par * STAGE + A_BYTES + j * 1024)
            kb.buf_load_lds(voW[j], srdW, sW)
            out.append(kb.ins)
        return out

    def adv_k():
        kb = K()
        kb.s("s_add_u32", sA, sA, BK * 2)
        if regA:
            kb.s("s_add_u32", sA2, sA2, BK * 2)
        kb.s("s_add_u32", sW, sW, stepW)
        return kb.ins

    PRO_ST = min(NST, 2)
    for pr, calc in zip(dma_group(k, 0), voff_calc):
        k.add(pr[0])
        for i in calc:
            k.add(i)
        k.add(pr[1])
    for i in adv_k():
        k.add(i)
    main_k = k
    k = K()
    stamp(k, 2, fine=True)
    if regA:
        k.s("s_mov_b32", sA2, NST * BK * 2)
        for j in range(cntA):
            k.buf_load(stg[j], voA[j], srdA, sA2)
        k.s("s_add_u32", sA2, sA2, BK * 2)
        k.v("v_lshlrev_b32", tmp[2], 4, lane)
        k.v("v_lshl_add_u32", adWr[0], wv, (cntA * 1024).bit_length() - 1, tmp[2])
        for st in range(1, NST):
            k.v("v_add_u32", adWr[st], st * STAGE, adWr[0])
    wm, wn = tmp[2], tmp[3]
    k.v("v_lshrrev_b32", wm, (WN.bit_length() - 1), wv)
    k.v("v_and_b32", wn, WN - 1, wv)
    l15, lq, t, t2 = tmp[4], tmp[5], tmp[6], tmp[7]
    k.v("v_and_b32", l15, 15, lane)
    k.v("v_lshrrev_b32", lq, 4, lane)
    k.v("v_mul_u32_u24", t, TM, wm)
    k.v("v_add_u32", t, t, l15)
    k.v("v_lshlrev_b32", t, 7, t)
    k.v("v_lshrrev_b32", t2, 1, l15)
    k.v("v_xor_b32", t2, t2, lq)
    k.v("v_lshl_add_u32", adA[0][0], t2, 4, t)
    k.v("v_xor_b32", adA[0][1], 64, adA[0][0])
    for st in range(1, NST):
        for ks in range(2):
            k.v("v_add_u32", adA[st][ks], st * STAGE, adA[0][ks])
    gq, rr, cc, f = tmp[8], tmp[9], tmp[10], tmp[11]
    k.v("v_lshrrev_b32", gq, 4, lane)
    k.v("v_bfe_u32", rr, lane, 2, 2)
    k.v("v_and_b32", cc, 3, lane)
    k.v("v_and_b32", f, 1, gq)
    k.v("v_lshl_or_b32", f, f, 2, rr)
    k.v("v_lshl_add_u32", t, gq, 3, rr)
    k.v("v_mul_u32_u24", t, PW, t)
    k.v("v_lshl_add_u32", t, cc, 3, t)
    k.v("v_add_u32", t, A_BYTES, t)
    for nb in range(NNB):
        k.v("v_mul_u32_u24", t2, NNB, wn)
        k.v("v_add_u32", t2, nb, t2)
        k.v("v_xor_b32", t2, t2, f)
        k.v("v_lshl_add_u32", adW[0][nb], t2, 5, t)
        for st in range(1, NST):
            k.v("v_add_u32", adW[st][nb], st * STAGE, adW[0][nb])
    for nb in range(NNB):
        for mb in range(NMB):
            for r in range(4):
                k.v("v_accvgpr_write_b32", acc[nb][mb][r], 0)

    setup = k.ins
    k = main_k
    if PRO_ST > 1:
        grp = dma_group(k, 1)
        per = (len(setup) + len(grp) - 1) // len(grp)
        for gi, pr in enumerate(grp):
            k.add(pr[0])
            for i in setup[gi * per:(gi + 1) * per]:
                k.add(i)
            k.add(pr[1])
        for i in adv_k():
            k.add(i)
    else:
        for i in setup:
            k.add(i)

    def reads(X, st, ks):
        out = []
        seq = []
        for i in range(max(NMB, NNB)):
            if i < NNB:
                seq.append(("W", i))
            if i < NMB:
                seq.append(("A", i))
        for typ, i in seq:
            if typ == "A":
                kb = K()
                kb.ds_read("ds_read_b128", Af[X][i], adA[st][ks], i * 16 * PA)
                out += kb.ins
            else:
                for tt in range(2):
                    kb = K()
                    kb.ds_read("ds_read_b64_tr_b16", Wf[X][i].sub(2 * tt, 2), adW[st][i],
                               ks * 32 * PW + tt * 4 * PW)
                    out += kb.ins
        return out

    CPS = cntA + cntW
    k.waitcnt(vm=(PRO_ST - 1) * CPS)
    k.barrier()
    stamp(k, 1)
    stamp(k, 3, fine=True)
    for i in reads(0, 0, 0):
        k.add(i)
    pro = k.ins

    def substep(X, rd, dmas, extra):
        kb = K()
        mf = []
        for nb in range(NNB):
            for mb in range(NMB):
                mf.append((nb, mb))
        n = len(mf)
        slots = [[] for _ in range(n)]
        span = max(1, (n * 3) // 4)
        for i, r in enumerate(rd):
            slots[(i * span) // max(1, len(rd))].append(r)
        seq = [i for pr in dmas for i in pr]
        for i, ins_ in enumerate(seq):
            slots[1 + (i * (n - 1)) // max(1, len(seq))].append(ins_)
        for e in extra:
            slots[n - 1].append(e)
        for i, (nb, mb) in enumerate(mf):
            if "nomfma" not in DIAG:
                kb.mfma(MF, acc[nb][mb], Wf[X][nb], Af[X][mb])
            for s_ in slots[i]:
                if "nomfma" in DIAG and s_.kind == "ds":
                    continue
                kb.add(s_)
        return kb.ins

    def stage_code(par, do_dma, do_next_read, last, vmn=None, ramp=False):
        out = []
        rdm, rex = [], []
        if ramp:
            for st in range(PRO_ST, NST):
                rdm += dma_group(None, st)
                rdm.append((adv_k()[0], adv_k()[1]))
        out += substep(0, reads(1, par, 1), rdm, [])
        if not last:
            kb = K()
            kb.waitcnt(vm=((NST - 2) * CPS if vmn is None else vmn), lg=0)
            kb.barrier()
            out += kb.ins
        rd = reads(0, (par + 1) % NST, 0) if do_next_read else []
        dm = dma_group(None, par, withA=not regA) if (do_dma and "nodma" not in DIAG) else []
        ex = adv_k() if do_dma else []
        out += substep(1, rd, dm, ex)
        return out

    first = K()
    if NST > PRO_ST:
        for par in range(NST):
            for i in stage_code(par, True, True, False, ramp=(par == 0)):
                first.add(i)
    body = K()
    body.label(f"{name}_loop")
    for par in range(NST):
        for i in stage_code(par, True, True, False):
            body.add(i)
    body.s("s_sub_u32", sLoop, sLoop, 1)
    body.s("s_cmp_lg_u32", sLoop, 0)
    body.branch("s_cbranch_scc1", f"{name}_loop")

    tail = K()
    if fused2:
        kq = tail
        kq.s("s_cmp_lg_u32", sRelu, 0)
        kq.branch("s_cbranch_scc1", f"{name}_nopre")
        vCp = epT[15]
        kq.v("v_and_b32", epT[8], 15, tid)
        kq.v("v_lshrrev_b32", epT[9], 6, tid)
        kq.v("v_lshrrev_b32", epT[10], (WN.bit_length() - 1), epT[9])
        kq.v("v_and_b32", epT[11], WN - 1, epT[9])
        kq.v("v_mul_u32_u24", epT[12], TM, epT[10])
        kq.v("v_add_u32", epT[12], epT[12], epT[8])
        kq.v("v_mul_u32_u24", epT[13], TN * 2, epT[11])
        kq.v("v_mad_u32_u24", vCp, epT[12], sLdc, epT[13])
        kq.v("v_bfe_u32", epT[8], tid, 4, 2)
        kq.v("v_and_b32", epT[12], 1, epT[8])
        kq.v("v_lshlrev_b32", epT[12], 5, epT[12])
        kq.v("v_lshrrev_b32", epT[13], 1, epT[8])
        kq.v("v_lshl_or_b32", epT[12], epT[13], 4, epT[12])
        kq.v("v_add_u32", vCp, vCp, epT[12])
        kq.v("v_readfirstlane_b32", sT[3], epT[9])
        kq.s("s_cmp_lg_u32", sT[3], 0)
        kq.branch("s_cbranch_scc1", f"{name}_flag_ok")
        kq.v("v_mov_b32", epT[8], sFlag)
        kq.s("s_mov_b32", sT[4], 1 << 22)
        kq.label(f"{name}_poll")
        kq.buf_load(epT[9], epT[8], srdF, 0, flags="sc1")
        kq.waitcnt(vm=0)
        kq.v("v_readfirstlane_b32", sT[5], epT[9])
        kq.s("s_cmp_lg_u32", sT[5], 0)
        kq.branch("s_cbranch_scc1", f"{name}_flag_ok")
        kq.raw("s_sleep 4", "other")
        kq.s("s_sub_u32", sT[4], sT[4], 1)
        kq.s("s_cmp_lg_u32", sT[4], 0)
        kq.branch("s_cbranch_scc1", f"{name}_poll")
        kq.label(f"{name}_flag_ok", landing=True)
        kq.barrier()
        cnt_ = 0
        for mb in range(NMB):
            for p in range(NNB // 2):
                kq.s("s_mov_b32", sT[1], mb * 16 * 2048)
                kq.buf_load(epG[cnt_], vCp, srdGt, sT[1], offset=p * 64, flags="sc1")
                kq.buf_load(epX[cnt_], vCp, srdX, sT[1], offset=p * 64)
                cnt_ += 1
        kq.label(f"{name}_nopre")
    for par in range(NST):
        for i in stage_code(par, False, par < NST - 1, par == NST - 1, vmn=max(0, NST - 2 - par) * CPS):
            tail.add(i)

    k = tail
    stamp(k, 2)
    vC = tmp[0]
    k.v("v_and_b32", l15, 15, tid)
    k.v("v_lshrrev_b32", wv, 6, tid)
    k.v("v_lshrrev_b32", wm, (WN.bit_length() - 1), wv)
    k.v("v_and_b32", wn, WN - 1, wv)
    k.v("v_mul_u32_u24", t, TM, wm)
    k.v("v_add_u32", t, t, l15)
    k.v("v_mul_u32_u24", t2, TN * 2, wn)
    k.v("v_mad_u32_u24", vC, t, sLdc, t2)
    k.v("v_bfe_u32", lq, tid, 4, 2)
    k.v("v_and_b32", t, 1, lq)
    k.v("v_lshlrev_b32", t, 5, t)
    k.v("v_lshrrev_b32", t2, 1, lq)
    k.v("v_lshl_or_b32", t, t2, 4, t)
    k.v("v_add_u32", vC, vC, t)
    sRow = sT[1]
    NSET = 4

    def epi(relu):
        cnt = 0
        for mb in range(NMB):
            if mb == 0:
                k.s("s_mov_b32", sRow, 0)
            else:
                k.s("s_lshl_b32", sT[2], sLdc, 4)
                k.s("s_add_u32", sRow, sRow, sT[2])
            for p in range(NNB // 2):
                base = 4 + (cnt % NSET) * 12
                cnt += 1
                tt = V(base, 8)
                T = V(base + 8, 4)
                for u in range(2):
                    for r in range(4):
                        k.v("v_accvgpr_read_b32", tt[u * 4 + r], acc[2 * p + u][mb][r])
                for q in range(4):
                    k.v("v_cvt_pk_bf16_f32", T[q], tt[2 * q], tt[2 * q + 1])
                k.v("v_permlane16_swap_b32", T[0], T[2])
                k.v("v_permlane16_swap_b32", T[1], T[3])
                if relu:
                    for q in range(4):
                        k.v("v_pk_max_i16", T[q], T[q], 0)
                k.buf_store(T, vC, srdC, sRow, offset=p * 64)

    MASK = 0xFFFF0000

    def groups():
        cnt = 0
        for mb in range(NMB):
            for p in range(NNB // 2):
                yield cnt, mb, p
                cnt += 1

    def row_off(mb):
        return mb * 16 * 2048

    def epi_silu_pub():
        for cnt, mb, p in groups():
            base = 4 + (cnt % NSET) * 12
            tt, T = V(base, 8), V(base + 8, 4)
            for u in range(2):
                for r in range(4):
                    k.v("v_accvgpr_read_b32", tt[u * 4 + r], acc[2 * p + u][mb][r])
            for q in range(4):
                k.v("v_cvt_pk_bf16_f32", T[q], tt[2 * q], tt[2 * q + 1])
            for q in range(4):
                z0, z1, e0, e1 = tt[0], tt[1], tt[2], tt[3]
                if q & 1:
                    z0, z1, e0, e1 = tt[4], tt[5], tt[6], tt[7]
                k.v("v_lshlrev_b32", z0, 16, T[q])
                k.v("v_and_b32", z1, MASK, T[q])
                k.v("v_mul_f32", e0, -1.4426950408889634, z0)
                k.v("v_mul_f32", e1, -1.4426950408889634, z1)
                k.v("v_exp_f32", e0, e0)
                k.v("v_exp_f32", e1, e1)
                k.v("v_add_f32", e0, 1.0, e0)
                k.v("v_add_f32", e1, 1.0, e1)
                k.v("v_rcp_f32", e0, e0)
                k.v("v_rcp_f32", e1, e1)
                k.v("v_mul_f32", z0, z0, e0)
                k.v("v_mul_f32", z1, z1, e1)
                k.v("v_cvt_pk_bf16_f32", T[q], z0, z1)
            k.v("v_permlane16_swap_b32", T[0], T[2])
            k.v("v_permlane16_swap_b32", T[1], T[3])
            k.buf_store(T, vC, srdC, 0, offset=p * 64 + 0, flags="sc1") if mb == 0 else None
            if mb:
                k.s("s_mov_b32", sRow, row_off(mb))
                k.buf_store(T, vC, srdC, sRow, offset=p * 64, flags="sc1")
        k.waitcnt(vm=0)
        k.barrier()
        k.v("v_lshrrev_b32", tmp[1], 6, tid)
        k.v("v_readfirstlane_b32", sT[3], tmp[1])
        k.s("s_cmp_lg_u32", sT[3], 0)
        k.branch("s_cbranch_scc1", f"{name}_end")
        k.v("v_mov_b32", tmp[2], sFlag)
        k.v("v_mov_b32", tmp[3], 1)
        k.buf_store(tmp[3], tmp[2], srdF, 0, flags="sc1")

    def epi_combine():
        Spk = [V(4 + 4 * i, 4) for i in range(NMB * NNB // 2)]
        Xr = epX
        for cnt, mb, p in groups():
            tt = V(epT[0].idx, 8)
            T = Spk[cnt]
            for u in range(2):
                for r in range(4):
                    k.v("v_accvgpr_read_b32", tt[u * 4 + r], acc[2 * p + u][mb][r])
            for q in range(4):
                k.v("v_cvt_pk_bf16_f32", T[q], tt[2 * q], tt[2 * q + 1])
            k.v("v_permlane16_swap_b32", T[0], T[2])
            k.v("v_permlane16_swap_b32", T[1], T[3])
        for cnt, mb, p in groups():
            T, Gq, Xq = Spk[cnt], epG[cnt], Xr[cnt]
            for q in range(4):
                s0, s1, g0, g1, x0, x1, pp = (epT[(q & 1) * 8 + i] for i in range(7))
                k.v("v_lshlrev_b32", s0, 16, T[q])
                k.v("v_and_b32", s1, MASK, T[q])
                k.v("v_lshlrev_b32", g0, 16, Gq[q])
                k.v("v_and_b32", g1, MASK, Gq[q])
                k.v("v_mul_f32", s0, s0, g0)
                k.v("v_mul_f32", s1, s1, g1)
                k.v("v_cvt_pk_bf16_f32", pp, s0, s1)
                k.v("v_lshlrev_b32", s0, 16, pp)
                k.v("v_and_b32", s1, MASK, pp)
                k.v("v_lshlrev_b32", x0, 16, Xq[q])
                k.v("v_and_b32", x1, MASK, Xq[q])
                k.v("v_add_f32", x0, x0, s0)
                k.v("v_add_f32", x1, x1, s1)
                k.v("v_cvt_pk_bf16_f32", T[q], x0, x1)
            k.s("s_mov_b32", sRow, row_off(mb))
            k.buf_store(T, vC, srdC, sRow, offset=p * 64)

    if fused2:
        k.s("s_cmp_eq_u32", sRelu, 0)
        k.branch("s_cbranch_scc1", f"{name}_epi_plain")
        epi_silu_pub()
        k.branch("s_branch", f"{name}_end")
        k.label(f"{name}_epi_plain", landing=True)
        epi_combine()
    else:
        if relu_possible:
            k.s("s_cmp_eq_u32", sRelu, 0)
            k.branch("s_cbranch_scc1", f"{name}_epi_plain")
            epi(True)
            if "stamps" in DIAG:
                k.waitcnt(vm=0)
                stamp(k, 3)
                stamp_store(k, name, S(76, 4), sP.sub(0, 2))
            k.branch("s_branch", f"{name}_end")
            k.label(f"{name}_epi_plain", landing=True)
        epi(False)
        if "stamps" in DIAG:
            k.waitcnt(vm=0)
            stamp(k, 3)
            stamp_store(k, name, S(76, 4), sP.sub(0, 2))
    k.label(f"{name}_end")
    k.endpgm()

    segs = [Seg(pro + first.ins), Seg(body.ins, loop=True), Seg(tail.ins)]
    return dict(name=name, segs=segs, vgpr=max(nvgpr, 8), agpr=nagpr, sgpr=(96 if "stamps" in DIAG else 64), lds=NST * STAGE)


def csel(k, dst, idx, a, b):
    if isinstance(b, int) and isinstance(a, int):
        k.s("s_mov_b32", dst, b)
        b = dst
    k.s("s_cmp_lt_u32", idx, 16)
    k.s("s_cselect_b32", dst, a, b)


def gen_gemm1():
    name = "gemm1_kernel"
    NWG = 240

    def decode(k, R):
        sT, sP = R["sT"], R["sP"]
        pws, pwq, pw1 = sP.sub(0, 2), sP.sub(2, 2), sP.sub(4, 2)
        k.s_load(pws, KARG, KA_WS * 8)
        k.s_load(pwq, KARG, KA_WQ * 8)
        k.s_load(pw1, KARG, KA_W1 * 8)
        xcd, idx, m, n, u = sT[0], sT[1], sT[2], sT[3], sT[4]
        k.s("s_and_b32", xcd, WGID, 7)
        k.s("s_lshr_b32", idx, WGID, 3)
        k.s("s_mul_i32", u, xcd, 14)
        k.s("s_add_u32", u, u, idx)
        k.s("s_sub_u32", u, u, 16)
        k.s("s_lshl_b32", n, xcd, 1)
        k.s("s_lshr_b32", sT[5], idx, 3)
        k.s("s_add_u32", n, n, sT[5])
        csel(k, m, idx, idx, u)
        k.s("s_and_b32", m, m, 7)
        k.s("s_lshr_b32", u, u, 3)
        csel(k, n, idx, n, u)
        pW = sP.sub(6, 2)
        csel(k, pW[0], idx, pwq[0], pw1[0])
        csel(k, pW[1], idx, pwq[1], pw1[1])
        csel(k, R["sLdw"], idx, 8192, 7168)
        csel(k, R["sLdc"], idx, LD_Q, LD_H)
        k.s("s_mov_b32", R["sLda"], 2048)
        csel(k, R["sRelu"], idx, 0, 1)
        cofs, csz, wsz = sP[8], sP[9], sP[10]
        csel(k, cofs, idx, WS_Q, WS_H)
        csel(k, csz, idx, SZ_Q, SZ_H)
        csel(k, wsz, idx, SZ_WQ, SZ_W1)
        k.s("s_mov_b32", R["sLoop"], 1024 // BK // R["NST"] - (2 if R["NST"] > 2 else 1))
        o1, o2 = sP[11], sP[12]
        k.s("s_lshl_b32", o1, m, 19)
        k.s("s_add_u32", o2, o1, WS_XN)
        mk_srd(k, R["srdA"], pws, o2, 0)
        k.s("s_sub_u32", R["srdA"][2], SZ_XN, o1)
        k.s("s_lshl_b32", o1, n, 9)
        mk_srd(k, R["srdW"], pW, o1, 0)
        k.s("s_sub_u32", R["srdW"][2], wsz, o1)
        k.s("s_lshl_b32", o2, m, 8)
        k.s("s_mul_i32", o2, o2, R["sLdc"])
        k.s("s_add_u32", o1, o1, o2)
        k.s("s_add_u32", o2, o1, cofs)
        mk_srd(k, R["srdC"], pws, o2, 0)
        k.s("s_sub_u32", R["srdC"][2], csz, o1)

    kd = gen_gemm(name, 256, 256, 2, 2, decode, NWG, True, ln_pre=bool(os.environ.get('LNPRE')))
    kd.update(grid=(NWG, 1, 1), block=(256, 1, 1))
    return kd


def gen_gemm2():
    name = "gemm2_kernel"
    NWG = 256

    def decode(k, R):
        sT, sP = R["sT"], R["sP"]
        pws, pwo, pw2 = sP.sub(0, 2), sP.sub(2, 2), sP.sub(4, 2)
        k.s_load(pws, KARG, KA_WS * 8)
        k.s_load(pwo, KARG, KA_WO * 8)
        k.s_load(pw2, KARG, KA_W2 * 8)
        k.s_load(R["srdC"].sub(0, 2), KARG, KA_OUT * 8)
        k.s_load(R["srdX"].sub(0, 2), KARG, KA_X * 8)
        xcd, idx, m, n = sT[0], sT[1], sT[2], sT[3]
        k.s("s_and_b32", xcd, WGID, 7)
        k.s("s_lshr_b32", idx, WGID, 3)
        k.s("s_bfe_u32", m, xcd, (1 << 16) | 1)
        k.s("s_lshl_b32", m, m, 3)
        k.s("s_and_b32", sT[4], idx, 7)
        k.s("s_add_u32", m, m, sT[4])
        k.s("s_and_b32", n, xcd, 1)
        k.s("s_lshl_b32", n, n, 2)
        k.s("s_lshr_b32", sT[4], idx, 3)
        k.s("s_add_u32", n, n, sT[4])
        k.s("s_lshr_b32", idx, xcd, 2)
        k.s("s_lshl_b32", idx, idx, 4)
        pW = sP.sub(6, 2)
        csel(k, pW[0], idx, pwo[0], pw2[0])
        csel(k, pW[1], idx, pwo[1], pw2[1])
        k.s("s_mov_b32", R["sLdw"], 2048)
        k.s("s_mov_b32", R["sLdc"], 2048)
        csel(k, R["sLda"], idx, LD_O, LD_H)
        csel(k, R["sRelu"], idx, 0, 1)
        aofs, asz, wsz, cofs = sP[8], sP[9], sP[10], sP[13]
        csel(k, aofs, idx, WS_O, WS_H)
        csel(k, asz, idx, SZ_O, SZ_H)
        csel(k, wsz, idx, SZ_WO, SZ_W2)
        csel(k, R["sLoop"], idx, 4096 // BK // R["NST"] - (2 if R["NST"] > 2 else 1), 3584 // BK // R["NST"] - (2 if R["NST"] > 2 else 1))
        o1, o2 = sP[11], sP[12]
        k.s("s_lshl_b32", o1, m, 7)
        k.s("s_mul_i32", o1, o1, R["sLda"])
        if "sametile" in DIAG:
            k.s("s_mov_b32", o1, 0)
        k.s("s_add_u32", o2, o1, aofs)
        mk_srd(k, R["srdA"], pws, o2, 0)
        k.s("s_sub_u32", R["srdA"][2], asz, o1)
        k.s("s_lshl_b32", o1, n, 8)
        if "sametile" in DIAG:
            k.s("s_mov_b32", o1, 0)
        mk_srd(k, R["srdW"], pW, o1, 0)
        k.s("s_sub_u32", R["srdW"][2], wsz, o1)
        k.s("s_lshl_b32", o1, n, 8)
        k.s("s_lshl_b32", o2, m, 18)
        k.s("s_add_u32", o1, o1, o2)
        csel(k, R["srdC"][0], idx, R["srdC"][0], pws[0])
        csel(k, R["srdC"][1], idx, R["srdC"][1], pws[1])
        csel(k, cofs, idx, 0, WS_G)
        k.s("s_add_u32", o2, o1, cofs)
        mk_srd(k, R["srdC"], R["srdC"].sub(0, 2), o2, 0)
        k.s("s_sub_u32", R["srdC"][2], SZ_OUT, o1)
        mk_srd(k, R["srdX"], R["srdX"].sub(0, 2), o1, 0)
        k.s("s_sub_u32", R["srdX"][2], SZ_X, o1)
        k.s("s_add_u32", o2, o1, WS_G)
        mk_srd(k, R["srdGt"], pws, o2, 0)
        k.s("s_sub_u32", R["srdGt"][2], SZ_G, o1)
        mk_srd(k, R["srdF"], pws, WS_FLAGS, 512)
        k.s("s_lshl_b32", R["sFlag"], m, 3)
        k.s("s_add_u32", R["sFlag"], R["sFlag"], n)
        k.s("s_lshl_b32", R["sFlag"], R["sFlag"], 2)

    kd = gen_gemm(name, 128, 128, 2, 2, decode, NWG, False, NST=4, regA=False, fused2=True)
    kd.update(grid=(NWG, 1, 1), block=(256, 1, 1))
    return kd
```

```python
from common import *
import os
PREFETCH = int(os.environ.get("PREFETCH", "1"))


def ln_row(k, voff, srdx, srdo, sA_, sB_, flags=""):
    raw = V(4, 8)
    k.buf_load(raw.sub(0, 4), voff, srdx)
    k.buf_load(raw.sub(4, 4), voff, srdx, offset=16)
    xf = V(12, 16)
    for i in range(8):
        k.v("v_lshlrev_b32", xf[2 * i], 16, raw[i])
        k.v("v_and_b32", xf[2 * i + 1], 0xFFFF0000, raw[i])
    acc, tmp, mean, mbf = V(28), V(29), V(30), V(31)
    t = V(32, 8)
    for i in range(8):
        k.v("v_add_f32", t[i], xf[2 * i], xf[2 * i + 1])
    for i in range(4):
        k.v("v_add_f32", t[i], t[i], t[i + 4])
    k.v("v_add_f32", t[0], t[0], t[2])
    k.v("v_add_f32", t[1], t[1], t[3])
    k.v("v_add_f32", acc, t[0], t[1])
    wave_sum(k, acc, tmp, sA_, sB_)
    k.v("v_mul_f32", mean, 1.0 / 1024, acc)
    d = V(40, 16)
    for i in range(16):
        k.v("v_sub_f32", d[i], xf[i], mean)
    for i in range(8):
        k.v("v_mul_f32", t[i], d[2 * i], d[2 * i])
        k.v("v_fmac_f32", t[i], d[2 * i + 1], d[2 * i + 1])
    for i in range(4):
        k.v("v_add_f32", t[i], t[i], t[i + 4])
    k.v("v_add_f32", t[0], t[0], t[2])
    k.v("v_add_f32", t[1], t[1], t[3])
    k.v("v_add_f32", acc, t[0], t[1])
    wave_sum(k, acc, tmp, sA_, sB_)
    var = V(56)
    k.v("v_mul_f32", var, 1.0 / 1024, acc)
    k.v("v_mov_b32", mbf, mean)
    bf16_round_scalar(k, mbf, tmp)
    bf16_round_scalar(k, var, tmp)
    k.v("v_add_f32", var, 1e-5, var)
    bf16_round_scalar(k, var, tmp)
    k.v("v_sqrt_f32", var, var)
    bf16_round_scalar(k, var, tmp)
    r = var
    rinv = V(57)
    k.v("v_rcp_f32", rinv, r)
    outp = V(60, 8)
    for i in range(8):
        a, b = d[2 * i], d[2 * i + 1]
        k.v("v_sub_f32", a, xf[2 * i], mbf)
        k.v("v_sub_f32", b, xf[2 * i + 1], mbf)
        k.v("v_cvt_pk_bf16_f32", tmp, a, b)
        k.v("v_lshlrev_b32", a, 16, tmp)
        k.v("v_and_b32", b, 0xFFFF0000, tmp)
        q0a, q0b, ea, eb = t[0], t[1], t[2], t[3]
        k.v("v_mul_f32", q0a, a, rinv)
        k.v("v_mul_f32", q0b, b, rinv)
        k.v("v_fma_f32", ea, Neg(q0a), r, a)
        k.v("v_fma_f32", eb, Neg(q0b), r, b)
        k.v("v_fma_f32", q0a, ea, rinv, q0a)
        k.v("v_fma_f32", q0b, eb, rinv, q0b)
        k.v("v_cvt_pk_bf16_f32", outp[i], q0a, q0b)
    k.buf_store(outp.sub(0, 4), voff, srdo, flags=flags)
    k.buf_store(outp.sub(4, 4), voff, srdo, offset=16, flags=flags)


def gen_ln():
    k = K()
    name = "ln_kernel"
    NWG = 512
    NPF = 480 if PREFETCH else 0
    k.s("s_cmp_ge_u32", WGID, NWG + NPF)
    k.branch("s_cbranch_scc1", f"{name}_end")
    if PREFETCH:
        k.s("s_cmp_ge_u32", WGID, NWG)
        k.branch("s_cbranch_scc1", f"{name}_pf")
    px, pws = S(4, 2), S(6, 2)
    k.s_load(px, KARG, KA_X * 8)
    k.s_load(pws, KARG, KA_WS * 8)
    srdx, srdo = S(8, 4), S(12, 4)
    tid, voff = V(0), V(1)
    k.v("v_lshrrev_b32", V(2), 6, tid)
    k.s("s_lshl_b32", S(16), WGID, 2)
    k.v("v_add_u32", V(2), S(16), V(2))
    k.v("v_lshlrev_b32", V(2), 11, V(2))
    k.v("v_and_b32", V(3), 63, tid)
    k.v("v_lshlrev_b32", V(3), 5, V(3))
    k.v("v_add_u32", voff, V(2), V(3))
    mk_srd(k, srdx, px, 0, SZ_X)
    mk_srd(k, srdo, pws, WS_XN, SZ_XN)
    ln_row(k, voff, srdx, srdo, S(18), S(19))
    if PREFETCH:
        k.branch("s_branch", f"{name}_end")
        k.label(f"{name}_pf", landing=True)
        j = S(20)
        k.s("s_sub_u32", j, WGID, NWG)
        tabs = [(KA_WQ, 128, SZ_WQ), (KA_W1, 112, SZ_W1), (KA_WO, 128, SZ_WO), (KA_W2, 112, SZ_W2)]
        pw = S(22, 2)
        sz = S(21)
        first = 0
        for ti, (slot, cnt, size) in enumerate(tabs):
            if ti < 3:
                k.s("s_cmp_ge_u32", j, first + cnt)
                k.branch("s_cbranch_scc1", f"{name}_pf{ti + 1}")
            k.s_load(pw, KARG, slot * 8)
            k.s("s_sub_u32", j, j, first)
            k.s("s_mov_b32", sz, size)
            k.branch("s_branch", f"{name}_pfgo")
            k.label(f"{name}_pf{ti + 1}", landing=True) if ti < 3 else None
            first += cnt
        k.label(f"{name}_pfgo", landing=True)
        mk_srd(k, S(8, 4), pw, 0, sz)
        k.s("s_lshl_b32", j, j, 16)
        k.v("v_lshlrev_b32", V(1), 4, V(0))
        k.v("v_add_u32", V(1), j, V(1))
        for i in range(16):
            k.add(Instr(f"buffer_load_dwordx4 v[{4 + 4 * (i % 8)}:{7 + 4 * (i % 8)}], v1, s[8:11], 0 offen offset:{(i % 1) * 0}"
                        .replace(" offset:0", "") + "", "vmem", [], [V(1), S(8, 4)]))
            k.v("v_add_u32", V(1), 4096, V(1))
    k.label(f"{name}_end")
    k.endpgm()
    return dict(name=name, segs=[Seg(k.ins)], vgpr=72, sgpr=28, grid=(NWG + NPF, 1, 1), block=(256, 1, 1), lds=0)


class Neg(Reg):
    def __init__(self, r):
        super().__init__(r.kind, r.idx, r.n)

    def __str__(self):
        return "-" + super().__str__()


def gen_combine(name):
    k = K()
    NWG = 1024
    k.s("s_cmp_ge_u32", WGID, NWG)
    k.branch("s_cbranch_scc1", f"{name}_end")
    px, pws, pout = S(4, 2), S(6, 2), S(20, 2)
    k.s_load(px, KARG, KA_X * 8)
    k.s_load(pws, KARG, KA_WS * 8)
    k.s_load(pout, KARG, KA_OUT * 8)
    tid, voff = V(0), V(1)
    k.s("s_lshl_b32", S(24), WGID, 12)
    k.v("v_lshlrev_b32", voff, 4, tid)
    k.v("v_add_u32", voff, S(24), voff)
    srdx, srds, srdg, srdo = S(8, 4), S(12, 4), S(16, 4), S(28, 4)
    mk_srd(k, srdx, px, 0, SZ_X)
    mk_srd(k, srds, pws, WS_S, SZ_S)
    mk_srd(k, srdg, pws, WS_G, SZ_G)
    mk_srd(k, srdo, pout, 0, SZ_OUT)
    rx, rs, rg = V(4, 4), V(8, 4), V(12, 4)
    k.buf_load(rg, voff, srdg)
    k.buf_load(rs, voff, srds)
    k.buf_load(rx, voff, srdx)
    outp = V(16, 4)
    MASK = 0xFFFF0000
    for i in range(4):
        b = 20 + 12 * i
        z0, z1, e0, e1, t, s0, s1, x0, x1 = (V(b + j) for j in range(9))
        k.v("v_lshlrev_b32", z0, 16, rg[i])
        k.v("v_and_b32", z1, MASK, rg[i])
        k.v("v_mul_f32", e0, -1.4426950408889634, z0)
        k.v("v_mul_f32", e1, -1.4426950408889634, z1)
        k.v("v_exp_f32", e0, e0)
        k.v("v_exp_f32", e1, e1)
        k.v("v_add_f32", e0, 1.0, e0)
        k.v("v_add_f32", e1, 1.0, e1)
        k.v("v_rcp_f32", e0, e0)
        k.v("v_rcp_f32", e1, e1)
        k.v("v_mul_f32", z0, z0, e0)
        k.v("v_mul_f32", z1, z1, e1)
        k.v("v_cvt_pk_bf16_f32", t, z0, z1)
        k.v("v_lshlrev_b32", z0, 16, t)
        k.v("v_and_b32", z1, MASK, t)
        k.v("v_lshlrev_b32", s0, 16, rs[i])
        k.v("v_and_b32", s1, MASK, rs[i])
        k.v("v_mul_f32", s0, s0, z0)
        k.v("v_mul_f32", s1, s1, z1)
        k.v("v_cvt_pk_bf16_f32", t, s0, s1)
        k.v("v_lshlrev_b32", s0, 16, t)
        k.v("v_and_b32", s1, MASK, t)
        k.v("v_lshlrev_b32", x0, 16, rx[i])
        k.v("v_and_b32", x1, MASK, rx[i])
        k.v("v_add_f32", x0, x0, s0)
        k.v("v_add_f32", x1, x1, s1)
        k.v("v_cvt_pk_bf16_f32", outp[i], x0, x1)
    k.buf_store(outp, voff, srdo)
    k.label(f"{name}_end")
    k.endpgm()
    return dict(name=name, segs=[Seg(k.ins)], vgpr=72, sgpr=32, grid=(NWG, 1, 1), block=(256, 1, 1), lds=0)
```

```python
from common import *
from k_elem import Neg
import k_gemm
from k_gemm import stamp, stamp_store, DIAG

MF = "v_mfma_f32_32x32x16_bf16"
NBLK = 16
KBUF, VBUF = 0, 32768
LDS_BYTES = 32768 + 3 * 16384

tid = V(0)
Qf = [V(4 + 4 * s, 4) for s in range(8)]
Oacc = [V(36 + 16 * db, 16) for db in range(4)]
Sset = [V(100, 16), V(116, 16)]
Pset = [V(132, 8), V(140, 8)]
Kf = [V(148 + 4 * s, 4) for s in range(8)]
Vf = [[V(180 + (db * 2 + ksx) * 4, 4) for ksx in range(2)] for db in range(4)]
X = [V(212 + i) for i in range(8)]
vM, l0, l1, lb0, lb1, mx, tA, tB = (V(220 + i) for i in range(8))
adK = [V(228 + s) for s in range(8)]
adV = [V(236 + db) for db in range(4)]
voK = [V(240), V(241)]
voV = [V(242), V(243)]
vQO = V(244)
T_ = [V(245 + i) for i in range(7)]
NVGPR = 252

srdQ, srdK, srdV, srdO = S(4, 4), S(8, 4), S(12, 4), S(16, 4)
sC, sWv, sOff = S(20), S(21), S(22)
sT = [S(24 + i) for i in range(8)]
sP = S(32, 8)
SCALE_LOG2E = 0.08838834764831845 * 1.4426950408889634


def sm_common(j):
    k = K()
    Sj, Pj = Sset[j & 1], Pset[j & 1]

    def tail(g):
        b = (g & 1) * 4
        if g == 0:
            k.v("v_add_f32", lb0, X[b], X[b + 1])
            k.v("v_add_f32", lb1, X[b + 2], X[b + 3])
        else:
            k.v("v_add_f32", lb0, lb0, X[b])
            k.v("v_add_f32", lb1, lb1, X[b + 1])
            k.v("v_add_f32", lb0, lb0, X[b + 2])
            k.v("v_add_f32", lb1, lb1, X[b + 3])
        k.v("v_cvt_pk_bf16_f32", Pj[2 * g], X[b], X[b + 1])
        k.v("v_cvt_pk_bf16_f32", Pj[2 * g + 1], X[b + 2], X[b + 3])

    for g in range(4):
        b = (g & 1) * 4
        for e in range(4):
            k.v("v_fma_f32", X[b + e], Sj[4 * g + e], sC, Neg(vM))
        for e in range(4):
            k.v("v_exp_f32", X[b + e], X[b + e])
        if g > 0:
            tail(g - 1)
    tail(3)
    k.v("v_add_f32", tA, lb0, lb1)
    k.vcmp("v_cmp_lt_f32", VCC, 256.0, tA)
    return k.ins


def exact_max(k, j):
    Sj = Sset[j & 1]
    k.v("v_max3_f32", mx, Sj[0], Sj[1], Sj[2])
    for i in range(3, 15, 2):
        k.v("v_max3_f32", mx, mx, Sj[i], Sj[i + 1])
    k.v("v_max_f32", mx, mx, Sj[15])
    k.v("v_mov_b32", tA, mx)
    k.v("v_permlane32_swap_b32", mx, tA)
    k.v("v_max_f32", mx, mx, tA)


def sm_first():
    k = K()
    exact_max(k, 0)
    k.v("v_mul_f32", vM, sC, mx)
    ins = k.ins + sm_common(0)
    return [i for i in ins if not i.text.startswith("v_cmp_lt_f32")]


def fixup(j):
    k = K()
    Sj, Pj = Sset[j & 1], Pset[j & 1]
    k.label(f"attn_fix_{j}", landing=True)
    exact_max(k, j)
    k.v("v_mul_f32", tA, sC, mx)
    k.v("v_max_f32", tA, vM, tA)
    k.v("v_sub_f32", tB, vM, tA)
    k.v("v_exp_f32", tB, tB)
    k.v("v_mov_b32", vM, tA)
    for db in range(4):
        for i in range(16):
            k.v("v_mul_f32", Oacc[db][i], Oacc[db][i], tB)
    k.v("v_mul_f32", l0, l0, tB)
    k.v("v_mul_f32", l1, l1, tB)
    for g in range(4):
        for e in range(4):
            k.v("v_fma_f32", X[e], Sj[4 * g + e], sC, Neg(vM))
        for e in range(4):
            k.v("v_exp_f32", X[e], X[e])
        if g == 0:
            k.v("v_add_f32", lb0, X[0], X[1])
            k.v("v_add_f32", lb1, X[2], X[3])
        else:
            k.v("v_add_f32", lb0, lb0, X[0])
            k.v("v_add_f32", lb1, lb1, X[1])
            k.v("v_add_f32", lb0, lb0, X[2])
            k.v("v_add_f32", lb1, lb1, X[3])
        k.v("v_cvt_pk_bf16_f32", Pj[2 * g], X[0], X[1])
        k.v("v_cvt_pk_bf16_f32", Pj[2 * g + 1], X[2], X[3])
    k.nop(3)
    k.branch("s_branch", f"attn_ret_{j}")
    return k.ins


def k_reads(b):
    k = K()
    off = ((b >> 1) & 1) * 16384 + (b & 1) * 8192
    for s in range(8):
        k.ds_read("ds_read_b128", Kf[s], adK[s], off)
    return k.ins


def v_reads(b):
    k = K()
    st = b >> 1
    base = (st % 3) * 16384 + (b & 1) * 8192
    for db in range(4):
        for ksx in range(2):
            for tt in range(2):
                k.ds_read("ds_read_b64_tr_b16", Vf[db][ksx].sub(2 * tt, 2), adV[db],
                          base + (16 * ksx + 8 * tt) * 256)
    return k.ins


def dma_stage(which, t):
    k = K()
    if which == "K":
        lbase, vo, srd = KBUF + (t & 1) * 16384, voK, srdK
    else:
        lbase, vo, srd = VBUF + (t % 3) * 16384, voV, srdV
    k.s("s_mov_b32", sOff, t * 16384)
    for j in range(2):
        k.s("s_add_u32", M0, sWv, lbase + j * 1024)
        k.buf_load_lds(vo[j], srd, sOff)
    return k.ins


def qk(b):
    k = K()
    S_ = Sset[b & 1]
    for s in range(8):
        k.mfma(MF, S_, Kf[s], Qf[s], 0 if s == 0 else None)
    return k.ins


def pv(b):
    k = K()
    P_ = Pset[b & 1]
    for ksx in range(2):
        for db in range(4):
            k.mfma(MF, Oacc[db], Vf[db][ksx], P_.sub(4 * ksx, 4))
    return k.ins


def interleave(k, mfmas, fill_lists):
    n = len(mfmas)
    if n == 0:
        for ins, lo, hi in fill_lists:
            for i in ins:
                k.add(i)
        return
    slots = [[] for _ in range(n)]
    for ins, lo, hi in fill_lists:
        m = len(ins)
        for idx, i in enumerate(ins):
            slots[lo + (idx * (hi - lo)) // m].append(i)
    for m, sl in zip(mfmas, slots):
        k.add(m)
        for i in sl:
            k.add(i)


def gen_attn():
    name = "attn_kernel"
    NWG = 256
    k = K()
    k.s("s_cmp_ge_u32", WGID, NWG)
    k.branch("s_cbranch_scc1", f"{name}_end")
    stamp(k, 0)
    pws, pk, pvv = sP.sub(0, 2), sP.sub(2, 2), sP.sub(4, 2)
    k.s_load(pws, KARG, KA_WS * 8)
    k.s_load(pk, KARG, KA_K * 8)
    k.s_load(pvv, KARG, KA_V * 8)
    srdZ = S(40, 4)
    k.s("s_cmp_lg_u32", WGID, 0)
    k.branch("s_cbranch_scc1", f"{name}_noclr")
    mk_srd(k, srdZ, pws, WS_FLAGS, 512)
    k.v("v_lshlrev_b32", T_[0], 2, tid)
    k.v("v_mov_b32", T_[1], 0)
    k.buf_store(T_[1], T_[0], srdZ, 0)
    k.label(f"{name}_noclr", landing=True)
    xcd, idx, g, idd, head, qblk = sT[0], sT[1], sT[2], sT[3], sT[4], sT[5]
    k.s("s_and_b32", xcd, WGID, 7)
    k.s("s_lshr_b32", idx, WGID, 3)
    k.s("s_lshr_b32", g, xcd, 1)
    k.s("s_and_b32", idd, xcd, 1)
    k.s("s_lshl_b32", idd, idd, 5)
    k.s("s_add_u32", idd, idd, idx)
    k.s("s_lshr_b32", head, idd, 3)
    k.s("s_lshl_b32", sT[6], g, 3)
    k.s("s_add_u32", head, head, sT[6])
    k.s("s_and_b32", qblk, idd, 7)
    toff = sT[6]
    k.s("s_mul_i32", toff, qblk, 256 * LD_Q)
    k.s("s_lshl_b32", sT[7], head, 8)
    k.s("s_add_u32", toff, toff, sT[7])
    k.s("s_add_u32", sT[7], toff, WS_Q)
    mk_srd(k, srdQ, pws, sT[7], 0)
    k.s("s_sub_u32", srdQ[2], SZ_Q, toff)
    k.s("s_add_u32", sT[7], toff, WS_O)
    mk_srd(k, srdO, pws, sT[7], 0)
    k.s("s_sub_u32", srdO[2], SZ_O, toff)
    k.s("s_lshl_b32", sT[7], g, 19)
    k.s("s_add_u32", sT[7], sT[7], 1536 * 256)
    mk_srd(k, srdK, pk, sT[7], 512 * 256)
    mk_srd(k, srdV, pvv, sT[7], 512 * 256)
    k.s("s_mov_b32", sC, f32bits(SCALE_LOG2E))
    lane, wv = T_[0], T_[1]
    k.v("v_and_b32", lane, 63, tid)
    k.v("v_lshrrev_b32", wv, 6, tid)
    k.v("v_readfirstlane_b32", sT[0], wv)
    k.s("s_lshl_b32", sWv, sT[0], 11)
    t0, t1, t2 = T_[2], T_[3], T_[4]
    for j in range(2):
        k.v("v_lshrrev_b32", t0, 4, lane)
        k.v("v_lshl_add_u32", t0, wv, 3, t0)
        k.v("v_add_u32", t0, 4 * j, t0)
        k.v("v_and_b32", t1, 15, lane)
        k.v("v_and_b32", t2, 15, t0)
        k.v("v_xor_b32", t2, t2, t1)
        k.v("v_lshlrev_b32", t2, 4, t2)
        k.v("v_lshl_add_u32", voK[j], t0, 8, t2)
        k.v("v_and_b32", t2, 3, t0)
        k.v("v_lshlrev_b32", t2, 2, t2)
        k.v("v_xor_b32", t2, t2, t1)
        k.v("v_lshlrev_b32", t2, 4, t2)
        k.v("v_lshl_add_u32", voV[j], t0, 8, t2)
    for i in dma_stage("K", 0):
        k.add(i)
    k.v("v_and_b32", t0, 31, lane)
    k.v("v_lshl_add_u32", t0, wv, 5, t0)
    k.v("v_lshrrev_b32", t1, 5, lane)
    k.v("v_lshlrev_b32", t1, 4, t1)
    k.s("s_mov_b32", sT[7], LD_Q)
    k.v("v_mad_u32_u24", vQO, t0, sT[7], t1)
    for s in range(8):
        k.buf_load(Qf[s], vQO, srdQ, 0, offset=32 * s)
    for which, t in (("V", 0), ("K", 1), ("V", 1), ("V", 2)):
        for i in dma_stage(which, t):
            k.add(i)
    hh, r31, l15 = T_[2], T_[3], T_[4]
    k.v("v_lshrrev_b32", hh, 5, lane)
    k.v("v_and_b32", r31, 31, lane)
    k.v("v_and_b32", l15, 15, lane)
    for s in range(8):
        k.v("v_add_u32", T_[5], 2 * s, hh)
        k.v("v_xor_b32", T_[5], T_[5], l15)
        k.v("v_lshlrev_b32", T_[5], 4, T_[5])
        k.v("v_lshl_add_u32", adK[s], r31, 8, T_[5])
    rr, cc, dsub = T_[2], T_[3], T_[4]
    k.v("v_bfe_u32", rr, lane, 2, 2)
    k.v("v_and_b32", cc, 3, lane)
    k.v("v_bfe_u32", dsub, lane, 4, 1)
    k.v("v_lshrrev_b32", T_[5], 5, lane)
    k.v("v_lshl_add_u32", T_[5], T_[5], 2, rr)
    k.v("v_lshlrev_b32", T_[5], 8, T_[5])
    k.v("v_and_b32", T_[6], 1, cc)
    k.v("v_lshl_add_u32", T_[5], T_[6], 3, T_[5])
    k.v("v_lshrrev_b32", T_[6], 1, cc)
    k.v("v_lshl_add_u32", T_[6], dsub, 1, T_[6])
    k.v("v_lshl_add_u32", T_[5], T_[6], 4, T_[5])
    k.v("v_add_u32", T_[5], VBUF, T_[5])
    for db in range(4):
        k.v("v_xor_b32", T_[6], db, rr)
        k.v("v_lshl_add_u32", adV[db], T_[6], 6, T_[5])
    for db in range(4):
        for i in range(16):
            k.v("v_mov_b32", Oacc[db][i], 0)
    k.v("v_mov_b32", l0, 0)
    k.v("v_mov_b32", l1, 0)
    k.waitcnt(vm=16)
    k.barrier()
    stamp(k, 1)
    for i in k_reads(0):
        k.add(i)

    for it in range(NBLK + 2):
        k.comment(f"---- iteration {it}")
        mf_qk = qk(it) if it < NBLK else []
        mf_pv = pv(it - 2) if 0 <= it - 2 < NBLK else []
        j = it - 1
        if j == 0:
            val = sm_first()
        elif 0 < j < NBLK:
            val = sm_common(j)
        else:
            val = []
        vr = v_reads(it - 2) if 0 <= it - 2 < NBLK else []
        kr = k_reads(it + 1) if it + 1 < NBLK else []
        if "attn_nosm" in DIAG:
            val = []
        if "attn_nolds" in DIAG:
            vr, kr = [], []
        dm = []
        if it & 1:
            t = (it - 1) // 2
            if t + 2 < 8:
                dm += dma_stage("K", t + 2)
            if t >= 2 and t + 1 < 8:
                dm += dma_stage("V", t + 1)
        mfmas = mf_qk + mf_pv
        nq, n = len(mf_qk), len(mf_qk) + len(mf_pv)
        fills = []
        if n:
            fills.append((val, 0, n))
            fills.append((vr, 0, max(nq, 1)))
            fills.append((kr, nq if nq < n else max(n - 1, 0), n))
            fills.append((dm, min(nq, n - 1), n))
            if nq == 0 and vr:
                for i in vr:
                    k.add(i)
                fills[1] = ([], 0, 1)
        interleave(k, mfmas, [f for f in fills if f[0]])
        if 1 <= j < NBLK:
            k.branch("s_cbranch_vccnz", f"attn_fix_{j}")
            k.label(f"attn_ret_{j}")
        if 0 <= j < NBLK:
            k.v("v_add_f32", l0, l0, lb0)
            k.v("v_add_f32", l1, l1, lb1)
        if (it & 1) == 0 and it <= 14:
            k.waitcnt(vm=0, lg=0)
            k.barrier()

    stamp(k, 2)
    k.v("v_add_f32", l0, l0, l1)
    k.v("v_mov_b32", tA, l0)
    k.v("v_permlane32_swap_b32", l0, tA)
    k.v("v_add_f32", l0, l0, tA)
    k.v("v_rcp_f32", tB, l0)
    cnt = 0
    for db in range(4):
        for pp in range(2):
            base = 100 + (cnt % 4) * 12
            cnt += 1
            tt, T = V(base, 8), V(base + 8, 4)
            for i in range(8):
                k.v("v_mul_f32", tt[i], Oacc[db][8 * pp + i], tB)
            for q in range(4):
                k.v("v_cvt_pk_bf16_f32", T[q], tt[2 * q], tt[2 * q + 1])
            k.v("v_permlane32_swap_b32", T[0], T[2])
            k.v("v_permlane32_swap_b32", T[1], T[3])
            k.buf_store(T, vQO, srdO, 0, offset=64 * db + 32 * pp)
    if "stamps" in DIAG:
        k.waitcnt(vm=0)
        stamp(k, 3)
        stamp_store(k, "attn", S(76, 4), pws)
    k.branch("s_branch", f"{name}_end")
    for j in range(1, NBLK):
        for i in fixup(j):
            k.add(i)
    k.label(f"{name}_end")
    k.endpgm()
    return dict(name=name, segs=[Seg(k.ins)], vgpr=NVGPR, sgpr=(96 if "stamps" in DIAG else 48), grid=(NWG, 1, 1), block=(512, 1, 1),
                lds=LDS_BYTES)
```

```python
from common import *
import os
PREFETCH = int(os.environ.get("PREFETCH", "1"))


def ln_row(k, voff, srdx, srdo, sA_, sB_, flags=""):
    raw = V(4, 8)
    k.buf_load(raw.sub(0, 4), voff, srdx)
    k.buf_load(raw.sub(4, 4), voff, srdx, offset=16)
    xf = V(12, 16)
    for i in range(8):
        k.v("v_lshlrev_b32", xf[2 * i], 16, raw[i])
        k.v("v_and_b32", xf[2 * i + 1], 0xFFFF0000, raw[i])
    acc, tmp, mean, mbf = V(28), V(29), V(30), V(31)
    t = V(32, 8)
    for i in range(8):
        k.v("v_add_f32", t[i], xf[2 * i], xf[2 * i + 1])
    for i in range(4):
        k.v("v_add_f32", t[i], t[i], t[i + 4])
    k.v("v_add_f32", t[0], t[0], t[2])
    k.v("v_add_f32", t[1], t[1], t[3])
    k.v("v_add_f32", acc, t[0], t[1])
    wave_sum(k, acc, tmp, sA_, sB_)
    k.v("v_mul_f32", mean, 1.0 / 1024, acc)
    d = V(40, 16)
    for i in range(16):
        k.v("v_sub_f32", d[i], xf[i], mean)
    for i in range(8):
        k.v("v_mul_f32", t[i], d[2 * i], d[2 * i])
        k.v("v_fmac_f32", t[i], d[2 * i + 1], d[2 * i + 1])
    for i in range(4):
        k.v("v_add_f32", t[i], t[i], t[i + 4])
    k.v("v_add_f32", t[0], t[0], t[2])
    k.v("v_add_f32", t[1], t[1], t[3])
    k.v("v_add_f32", acc, t[0], t[1])
    wave_sum(k, acc, tmp, sA_, sB_)
    var = V(56)
    k.v("v_mul_f32", var, 1.0 / 1024, acc)
    k.v("v_mov_b32", mbf, mean)
    bf16_round_scalar(k, mbf, tmp)
    bf16_round_scalar(k, var, tmp)
    k.v("v_add_f32", var, 1e-5, var)
    bf16_round_scalar(k, var, tmp)
    k.v("v_sqrt_f32", var, var)
    bf16_round_scalar(k, var, tmp)
    r = var
    rinv = V(57)
    k.v("v_rcp_f32", rinv, r)
    outp = V(60, 8)
    for i in range(8):
        a, b = d[2 * i], d[2 * i + 1]
        k.v("v_sub_f32", a, xf[2 * i], mbf)
        k.v("v_sub_f32", b, xf[2 * i + 1], mbf)
        k.v("v_cvt_pk_bf16_f32", tmp, a, b)
        k.v("v_lshlrev_b32", a, 16, tmp)
        k.v("v_and_b32", b, 0xFFFF0000, tmp)
        q0a, q0b, ea, eb = t[0], t[1], t[2], t[3]
        k.v("v_mul_f32", q0a, a, rinv)
        k.v("v_mul_f32", q0b, b, rinv)
        k.v("v_fma_f32", ea, Neg(q0a), r, a)
        k.v("v_fma_f32", eb, Neg(q0b), r, b)
        k.v("v_fma_f32", q0a, ea, rinv, q0a)
        k.v("v_fma_f32", q0b, eb, rinv, q0b)
        k.v("v_cvt_pk_bf16_f32", outp[i], q0a, q0b)
    k.buf_store(outp.sub(0, 4), voff, srdo, flags=flags)
    k.buf_store(outp.sub(4, 4), voff, srdo, offset=16, flags=flags)


def gen_ln():
    k = K()
    name = "ln_kernel"
    NWG = 512
    NPF = 496 if PREFETCH else 0
    k.s("s_cmp_ge_u32", WGID, NWG + NPF)
    k.branch("s_cbranch_scc1", f"{name}_end")
    if PREFETCH:
        k.s("s_cmp_ge_u32", WGID, NWG)
        k.branch("s_cbranch_scc1", f"{name}_pf")
    px, pws = S(4, 2), S(6, 2)
    k.s_load(px, KARG, KA_X * 8)
    k.s_load(pws, KARG, KA_WS * 8)
    srdx, srdo = S(8, 4), S(12, 4)
    tid, voff = V(0), V(1)
    k.v("v_lshrrev_b32", V(2), 6, tid)
    k.s("s_lshl_b32", S(16), WGID, 2)
    k.v("v_add_u32", V(2), S(16), V(2))
    k.v("v_lshlrev_b32", V(2), 11, V(2))
    k.v("v_and_b32", V(3), 63, tid)
    k.v("v_lshlrev_b32", V(3), 5, V(3))
    k.v("v_add_u32", voff, V(2), V(3))
    mk_srd(k, srdx, px, 0, SZ_X)
    mk_srd(k, srdo, pws, WS_XN, SZ_XN)
    ln_row(k, voff, srdx, srdo, S(18), S(19))
    if PREFETCH:
        k.branch("s_branch", f"{name}_end")
        k.label(f"{name}_pf", landing=True)
        j = S(20)
        k.s("s_sub_u32", j, WGID, NWG)
        k.s("s_cmp_lt_u32", j, 480)
        k.branch("s_cbranch_scc1", f"{name}_pfw")
        k.s("s_sub_u32", j, j, 480)
        k.s_load(S(22, 2), KARG, KA_K * 8)
        k.s_load(S(26, 2), KARG, KA_V * 8)
        k.s("s_cmp_ge_u32", j, 8)
        k.s("s_cselect_b32", S(22), S(26), S(22))
        k.s("s_cmp_ge_u32", j, 8)
        k.s("s_cselect_b32", S(23), S(27), S(23))
        k.s("s_bfe_u32", S(21), j, (2 << 16) | 1)
        k.s("s_lshl_b32", S(21), S(21), 3)
        k.s("s_and_b32", j, j, 1)
        k.s("s_add_u32", j, j, S(21))
        k.s("s_add_u32", j, j, 6)
        k.s("s_mov_b32", S(21), SZ_KV)
        k.branch("s_branch", f"{name}_pfgo")
        k.label(f"{name}_pfw", landing=True)
        tabs = [(KA_WQ, 128, SZ_WQ), (KA_W1, 112, SZ_W1), (KA_WO, 128, SZ_WO), (KA_W2, 112, SZ_W2)]
        if os.environ.get("PFHALF"):
            k.s("s_cmp_ge_u32", j, 240)
            k.branch("s_cbranch_scc1", f"{name}_end")
        pw = S(22, 2)
        sz = S(21)
        first = 0
        for ti, (slot, cnt, size) in enumerate(tabs):
            if ti < 3:
                k.s("s_cmp_ge_u32", j, first + cnt)
                k.branch("s_cbranch_scc1", f"{name}_pf{ti + 1}")
            k.s_load(pw, KARG, slot * 8)
            k.s("s_sub_u32", j, j, first)
            k.s("s_mov_b32", sz, size)
            k.branch("s_branch", f"{name}_pfgo")
            k.label(f"{name}_pf{ti + 1}", landing=True) if ti < 3 else None
            first += cnt
        k.label(f"{name}_pfgo", landing=True)
        mk_srd(k, S(8, 4), pw, 0, sz)
        k.s("s_lshl_b32", j, j, 16)
        k.v("v_lshlrev_b32", V(1), 4, V(0))
        k.v("v_add_u32", V(1), j, V(1))
        for i in range(16):
            k.add(Instr(f"buffer_load_dwordx4 v[{4 + 4 * (i % 8)}:{7 + 4 * (i % 8)}], v1, s[8:11], 0 offen offset:{(i % 1) * 0}"
                        .replace(" offset:0", "") + "", "vmem", [], [V(1), S(8, 4)]))
            k.v("v_add_u32", V(1), 4096, V(1))
    k.label(f"{name}_end")
    k.endpgm()
    return dict(name=name, segs=[Seg(k.ins)], vgpr=72, sgpr=32, grid=(NWG + NPF, 1, 1), block=(256, 1, 1), lds=0)


class Neg(Reg):
    def __init__(self, r):
        super().__init__(r.kind, r.idx, r.n)

    def __str__(self):
        return "-" + super().__str__()


def gen_combine(name):
    k = K()
    NWG = 1024
    k.s("s_cmp_ge_u32", WGID, NWG)
    k.branch("s_cbranch_scc1", f"{name}_end")
    px, pws, pout = S(4, 2), S(6, 2), S(20, 2)
    k.s_load(px, KARG, KA_X * 8)
    k.s_load(pws, KARG, KA_WS * 8)
    k.s_load(pout, KARG, KA_OUT * 8)
    tid, voff = V(0), V(1)
    k.s("s_lshl_b32", S(24), WGID, 12)
    k.v("v_lshlrev_b32", voff, 4, tid)
    k.v("v_add_u32", voff, S(24), voff)
    srdx, srds, srdg, srdo = S(8, 4), S(12, 4), S(16, 4), S(28, 4)
    mk_srd(k, srdx, px, 0, SZ_X)
    mk_srd(k, srds, pws, WS_S, SZ_S)
    mk_srd(k, srdg, pws, WS_G, SZ_G)
    mk_srd(k, srdo, pout, 0, SZ_OUT)
    rx, rs, rg = V(4, 4), V(8, 4), V(12, 4)
    k.buf_load(rg, voff, srdg)
    k.buf_load(rs, voff, srds)
    k.buf_load(rx, voff, srdx)
    outp = V(16, 4)
    MASK = 0xFFFF0000
    for i in range(4):
        b = 20 + 12 * i
        z0, z1, e0, e1, t, s0, s1, x0, x1 = (V(b + j) for j in range(9))
        k.v("v_lshlrev_b32", z0, 16, rg[i])
        k.v("v_and_b32", z1, MASK, rg[i])
        k.v("v_mul_f32", e0, -1.4426950408889634, z0)
        k.v("v_mul_f32", e1, -1.4426950408889634, z1)
        k.v("v_exp_f32", e0, e0)
        k.v("v_exp_f32", e1, e1)
        k.v("v_add_f32", e0, 1.0, e0)
        k.v("v_add_f32", e1, 1.0, e1)
        k.v("v_rcp_f32", e0, e0)
        k.v("v_rcp_f32", e1, e1)
        k.v("v_mul_f32", z0, z0, e0)
        k.v("v_mul_f32", z1, z1, e1)
        k.v("v_cvt_pk_bf16_f32", t, z0, z1)
        k.v("v_lshlrev_b32", z0, 16, t)
        k.v("v_and_b32", z1, MASK, t)
        k.v("v_lshlrev_b32", s0, 16, rs[i])
        k.v("v_and_b32", s1, MASK, rs[i])
        k.v("v_mul_f32", s0, s0, z0)
        k.v("v_mul_f32", s1, s1, z1)
        k.v("v_cvt_pk_bf16_f32", t, s0, s1)
        k.v("v_lshlrev_b32", s0, 16, t)
        k.v("v_and_b32", s1, MASK, t)
        k.v("v_lshlrev_b32", x0, 16, rx[i])
        k.v("v_and_b32", x1, MASK, rx[i])
        k.v("v_add_f32", x0, x0, s0)
        k.v("v_add_f32", x1, x1, s1)
        k.v("v_cvt_pk_bf16_f32", outp[i], x0, x1)
    k.buf_store(outp, voff, srdo)
    k.label(f"{name}_end")
    k.endpgm()
    return dict(name=name, segs=[Seg(k.ins)], vgpr=72, sgpr=32, grid=(NWG, 1, 1), block=(256, 1, 1), lds=0)
```
